```python
import torch

def _softmax(x, axis=-1):
    return torch.softmax(x, dim=axis)

def _gelu(x):
    return torch.nn.functional.gelu(x, approximate='tanh')

def _silu(x):
    return torch.nn.functional.silu(x)

def _sigmoid(x):
    return torch.sigmoid(x)

def _layernorm(x, axis=-1, eps=1e-05):
    m = x.mean(dim=axis, keepdim=True)
    v = x.var(dim=axis, keepdim=True, unbiased=False)
    return (x - m) / torch.sqrt(v + eps)

def _scatter_add(tgt, idx, src, axis=0):
    return tgt.clone().index_add_(axis, idx, src)

def _segment_sum(src, seg, n):
    out = torch.zeros((n,) + src.shape[1:], dtype=src.dtype)
    return out.index_add_(0, seg, src)

def _pad(x, pw):
    flat = tuple((v for pair in reversed(pw) for v in pair))
    return torch.nn.functional.pad(x, flat)
kernel_name = 'standalone__tree_speculative_verify_tree_attention_over_candidate_token_tree__sampling'

def setup_inputs():

    _w = lambda a: (lambda t: t.to(torch.bfloat16) if t.is_floating_point() else t)(torch.as_tensor(a))
    B, Hq, Hkv, T, C, D = (32, 32, 8, 8, 2048, 128)
    tree_mask = torch.zeros((B, T, T), dtype=float)
    for b in range(B):
        parent = torch.zeros(T, dtype=torch.int64)
        for i in range(1, T):
            parent[i] = int(torch.randint(0, i, (1,)).item())
        for i in range(T):
            j = i
            tree_mask[b, i, j] = 1.0
            while j > 0:
                j = parent[j]
                tree_mask[b, i, j] = 1.0
    return {'q': _w((lambda *s: torch.randn(*s, dtype=torch.bfloat16) * 0.8)(B, Hq, T, D)), 'k_cache': _w((lambda *s: torch.randn(*s, dtype=torch.bfloat16) * 0.8)(B, Hkv, C, D)), 'v_cache': _w((lambda *s: torch.randn(*s, dtype=torch.bfloat16) * 0.05)(B, Hkv, C, D)), 'k_tree': _w((lambda *s: torch.randn(*s, dtype=torch.bfloat16) * 0.8)(B, Hkv, T, D)), 'v_tree': _w((lambda *s: torch.randn(*s, dtype=torch.bfloat16) * 0.05)(B, Hkv, T, D)), 'tree_mask': _w(tree_mask)}

def reference(q, k_cache, v_cache, k_tree, v_tree, tree_mask):
    B, Hq, T, D = q.shape
    Hkv, C = (k_cache.shape[1], k_cache.shape[2])
    rep = Hq // Hkv
    kc = (lambda x, n, axis: torch.repeat_interleave(x, n, dim=axis))(k_cache, rep, axis=1)
    vc = (lambda x, n, axis: torch.repeat_interleave(x, n, dim=axis))(v_cache, rep, axis=1)
    kt = (lambda x, n, axis: torch.repeat_interleave(x, n, dim=axis))(k_tree, rep, axis=1)
    vt = (lambda x, n, axis: torch.repeat_interleave(x, n, dim=axis))(v_tree, rep, axis=1)
    k = torch.concatenate([kc, kt], axis=2)
    v = torch.concatenate([vc, vt], axis=2)
    scale = D ** (-0.5)
    scores = torch.einsum('bhqd,bhkd->bhqk', q, k) * scale
    ctx_mask = torch.ones((B, 1, T, C), dtype=scores.dtype)
    tm = tree_mask[:, None, :, :].clone()
    full_mask = torch.concatenate([ctx_mask, tm], axis=-1)
    scores = scores + (1.0 - full_mask) * -1000000000.0
    p = _softmax(scores, axis=-1)
    return torch.einsum('bhqk,bhkd->bhqd', p, v)
```

```python
import sys, struct, math
NAME = "standalone__tree_speculative_verify_tree_attention_over_candidate_token_tree__sampling"
HDR = open('cdna_kernels/%s.s.ref' % NAME).read().split('; @launch')[0]

def f32(x):
    return struct.unpack('<I', struct.pack('<f', x))[0]

class G:
    def __init__(s):
        s.l = []
        s.vm = []
    def e(s, t): s.l.append('    ' + t)
    def c(s, t): s.l.append('    ; ' + t)
    def lab(s, t): s.l.append(t + ':')
    def load(s, t, tag):
        s.e(t); s.vm.append(tag)
    def wait(s, tags):
        idx = [i for i, t in enumerate(s.vm) if t in tags]
        if not idx: return
        last = max(idx)
        n = len(s.vm) - 1 - last
        s.e('s_waitcnt vmcnt(%d)' % n)
        s.vm = s.vm[last + 1:]

def gen(opts):
    NW = 8
    g = G()
    e, c = g.e, g.c
    vTID = 0; vKOFF = 1; vVOFF = 2; vADD0 = 3; vADD1 = 4
    vTS = 6
    vM = [10, 11]; vL = [12, 13]; vT0 = 14; vT1 = 15
    vQ = 16
    vS = 48
    vRING = 176
    slots = [vRING + 16 * i for i in range(5)]
    vVT = 32
    vP = vS
    vO = vS + 64
    sWAVE = 3
    sQ, sK, sV, sKT, sVT, sMK, sOUT = 8, 12, 16, 20, 24, 28, 32
    sPTR = 36
    sC = 52; sPLO = 53; sPHI = 54; s4096 = 55; sOFFK = 56; sOFFV = 57; sT = 58; sT2 = 59; sBIG = 60
    SCALE = 128 ** -0.5
    CEXP = SCALE * math.log2(math.e)
    BIG = -1e9 / SCALE

    e('s_cmp_ge_u32 s2, 256')
    e('s_cbranch_scc1 L_end')
    e('s_load_dwordx16 s[%d:%d], s[0:1], 0' % (sPTR, sPTR + 15))
    e('v_lshrrev_b32 v%d, 6, v0' % vT0)
    e('v_and_b32 v%d, 63, v0' % vT1)
    e('v_readfirstlane_b32 s%d, v%d' % (sWAVE, vT0))
    e('v_lshlrev_b32 v%d, 4, v%d' % (vVOFF, vT1))
    e('v_and_b32 v20, 3, v%d' % vT1)
    e('v_lshlrev_b32 v20, 10, v20')
    e('v_bfe_u32 v21, v%d, 2, 2' % vT1)
    e('v_lshlrev_b32 v21, 8, v21')
    e('v_lshrrev_b32 v22, 4, v%d' % vT1)
    e('v_lshlrev_b32 v23, 4, v22')
    e('v_add3_u32 v%d, v20, v21, v23' % vKOFF)
    e('v_and_b32 v20, 15, v%d' % vT1)
    e('v_lshl_add_u32 v10, v20, 8, v23')
    e('v_and_b32 v20, 7, v%d' % vT1)
    e('v_lshlrev_b32 v21, 1, v22')
    e('v_lshl_add_u32 v11, v20, 4, v21')
    e('s_mov_b32 s%d, 0x%08x' % (sC, f32(CEXP)))
    e('s_mov_b32 s%d, 0x05040100' % sPLO)
    e('s_mov_b32 s%d, 0x07060302' % sPHI)
    e('s_mov_b32 s%d, 4096' % s4096)
    e('s_mov_b32 s%d, 0x%08x' % (sBIG, f32(BIG)))
    e('s_waitcnt lgkmcnt(0)')
    def srd(d, p, off_sgpr, nrec):
        e('s_add_u32 s%d, s%d, s%d' % (d, sPTR + 2 * p, off_sgpr))
        e('s_addc_u32 s%d, s%d, 0' % (d + 1, sPTR + 2 * p + 1))
        e('s_mov_b32 s%d, %d' % (d + 2, nrec))
        e('s_mov_b32 s%d, 0x00020000' % (d + 3))
    e('s_lshl_b32 s%d, s2, 19' % sT)
    e('s_lshl_b32 s%d, s%d, 16' % (sT2, sWAVE))
    e('s_add_u32 s%d, s%d, s%d' % (sT, sT, sT2))
    srd(sK, 1, sT, 65536)
    srd(sV, 2, sT, 65536)
    e('s_lshl_b32 s%d, s2, 13' % sT)
    srd(sQ, 0, sT, 8192)
    srd(sOUT, 6, sT, 8192)
    e('s_lshl_b32 s%d, s2, 11' % sT)
    srd(sKT, 3, sT, 2048)
    srd(sVT, 4, sT, 2048)
    e('s_lshr_b32 s%d, s2, 3' % sT)
    e('s_lshl_b32 s%d, s%d, 7' % (sT, sT))
    srd(sMK, 5, sT, 128)
    e('s_mov_b32 s%d, 0' % sOFFK)
    e('s_mov_b32 s%d, 0' % sOFFV)

    free = list(slots)
    unit_slot = {}
    def issue_unit(j):
        sl = free.pop(0)
        unit_slot[j] = sl
        if j < 16:
            for s in range(4):
                g.load('buffer_load_dwordx4 v[%d:%d], v%d, s[%d:%d], s%d offen offset:%d' %
                       (sl + 4 * s, sl + 4 * s + 3, vKOFF, sK, sK + 3, sOFFK, 64 * s), ('u', j))
            e('s_add_u32 s%d, s%d, 4096' % (sOFFK, sOFFK))
        elif j < 32:
            for i in range(4):
                g.load('buffer_load_dwordx4 v[%d:%d], v%d, s[%d:%d], s%d offen offset:%d' %
                       (sl + 4 * i, sl + 4 * i + 3, vVOFF, sV, sV + 3, sOFFV, 1024 * i), ('u', j))
            e('s_add_u32 s%d, s%d, 4096' % (sOFFV, sOFFV))
        else:
            for i in range(2):
                g.load('buffer_load_dwordx4 v[%d:%d], v%d, s[%d:%d], 0 offen offset:%d' %
                       (sl + 4 * i, sl + 4 * i + 3, vVOFF, sVT, sVT + 3, 1024 * i), ('u', j))

    c('Q loads')
    for u in range(2):
        for s in range(4):
            r = vQ + (u * 4 + s) * 4
            g.load('buffer_load_dwordx4 v[%d:%d], v10, s[%d:%d], %s offen offset:%d' %
                   (r, r + 3, sQ, sQ + 3, ('s%d' % s4096) if u else '0', 64 * s), 'q')
    c('tree K + mask loads')
    slT = free.pop(0)
    for s in range(4):
        g.load('buffer_load_dwordx4 v[%d:%d], v%d, s[%d:%d], 0 offen offset:%d' %
               (slT + 4 * s, slT + 4 * s + 3, vKOFF, sKT, sKT + 3, 64 * s), 'kt')
    g.load('buffer_load_ushort v%d, v11, s[%d:%d], 0 offen' % (vADD0, sMK, sMK + 3), 'mk')
    g.load('buffer_load_ushort v%d, v11, s[%d:%d], 0 offen offset:8' % (vADD1, sMK, sMK + 3), 'mk')
    nxt = 0
    while free:
        issue_unit(nxt); nxt += 1
    def mf(d, a, b, cc, k16=False):
        if k16:
            e('v_mfma_f32_16x16x16_bf16 v[%d:%d], v[%d:%d], v[%d:%d], %s' % (d, d + 3, a, a + 1, b, b + 1, cc))
        else:
            e('v_mfma_f32_16x16x32_bf16 v[%d:%d], v[%d:%d], v[%d:%d], %s' % (d, d + 3, a, a + 3, b, b + 3, cc))
    def acc(d): return 'v[%d:%d]' % (d, d + 3)
    c('tree QK')
    g.wait(['q', 'kt', 'mk'])
    vTT = vS + 7 * 16
    for u in range(2):
        for s in range(4):
            d = vTT + u * 4
            mf(d, slT + 4 * s, vQ + (u * 4 + s) * 4, '0' if s == 0 else acc(d))
    free.append(slT)
    issue_unit(nxt); nxt += 1
    e('v_lshlrev_b32 v%d, 16, v%d' % (vADD0, vADD0))
    e('v_lshlrev_b32 v%d, 16, v%d' % (vADD1, vADD1))
    e('v_sub_f32 v%d, 1.0, v%d' % (vADD0, vADD0))
    e('v_sub_f32 v%d, 1.0, v%d' % (vADD1, vADD1))
    e('v_mul_f32 v%d, s%d, v%d' % (vADD0, sBIG, vADD0))
    e('v_mul_f32 v%d, s%d, v%d' % (vADD1, sBIG, vADD1))
    e('s_cmp_eq_u32 s%d, 0' % sWAVE)
    e('s_cbranch_scc1 L_w0')
    e('v_mov_b32 v%d, 0xff800000' % vADD0)
    e('v_mov_b32 v%d, 0xff800000' % vADD1)
    g.lab('L_w0')
    e('s_nop 4')
    e('v_add_f32 v%d, v%d, v%d' % (vTS + 0, vTT + 0, vADD0))
    e('v_add_f32 v%d, v%d, v%d' % (vTS + 1, vTT + 1, vADD1))
    e('v_add_f32 v%d, v%d, v%d' % (vTS + 2, vTT + 4, vADD0))
    e('v_add_f32 v%d, v%d, v%d' % (vTS + 3, vTT + 5, vADD1))

    c('K phase')
    for t in range(16):
        b, tau = t // 2, t % 2
        g.wait([('u', t)])
        sl = unit_slot[t]
        for u in range(2):
            d = vS + b * 16 + u * 8 + tau * 4
            for s in range(4):
                mf(d, sl + 4 * s, vQ + (u * 4 + s) * 4, '0' if s == 0 else acc(d))
        free.append(sl)
        if t == 15:
            free.append(vQ)
        while free and nxt <= 32:
            issue_unit(nxt); nxt += 1

    c('softmax: max')
    e('s_nop 7')
    for u in range(2):
        vals = [vS + b * 16 + u * 8 + k for b in range(8) for k in range(8)] + [vTS + 2 * u, vTS + 2 * u + 1]
        e('v_max_f32 v%d, v%d, v%d' % (vM[u], vals[0], vals[1]))
        for k in range(2, len(vals), 2):
            e('v_max3_f32 v%d, v%d, v%d, v%d' % (vM[u], vM[u], vals[k], vals[k + 1]))
    def xreduce(regs, op):
        tmps = [vT0, vT1]
        for sw in ('v_permlane16_swap_b32', 'v_permlane32_swap_b32'):
            for r, t in zip(regs, tmps):
                e('v_mov_b32 v%d, v%d' % (t, r))
            e('s_nop 1')
            for r, t in zip(regs, tmps):
                e('%s v%d, v%d' % (sw, r, t))
            e('s_nop 1')
            for r, t in zip(regs, tmps):
                e('%s v%d, v%d, v%d' % (op, r, r, t))
    xreduce(vM, 'v_max_f32')
    c('softmax: exp / sum / pack')
    vMC = [vVT, vVT + 1]
    for u in range(2):
        e('v_mul_f32 v%d, s%d, v%d' % (vMC[u], sC, vM[u]))
        e('v_mov_b32 v%d, 0' % vL[u])
    for u in range(2):
        for k in range(2):
            r = vTS + 2 * u + k
            e('v_fma_f32 v%d, v%d, s%d, -v%d' % (r, r, sC, vMC[u]))
    for r in range(vTS, vTS + 4):
        e('v_exp_f32 v%d, v%d' % (r, r))
    e('s_nop 0')
    for u in range(2):
        e('v_add_f32 v%d, v%d, v%d' % (vVT + 2 + u, vTS + 2 * u, vTS + 2 * u + 1))
    e('v_cvt_pk_bf16_f32 v%d, v%d, v%d' % (vTS, vTS, vTS + 1))
    e('v_mov_b32 v%d, 0' % (vTS + 1))
    e('v_cvt_pk_bf16_f32 v%d, v%d, v%d' % (vTS + 2, vTS + 2, vTS + 3))
    e('v_mov_b32 v%d, 0' % (vTS + 3))
    vL2 = [vVT + 2, vVT + 3]
    for b in range(8):
        for u in range(2):
            base = vS + b * 16 + u * 8
            for k in range(8):
                e('v_fma_f32 v%d, v%d, s%d, -v%d' % (base + k, base + k, sC, vMC[u]))
            for k in range(8):
                e('v_exp_f32 v%d, v%d' % (base + k, base + k))
            for k in range(0, 8, 2):
                e('v_add_f32 v%d, v%d, v%d' % (vL[u], vL[u], base + k))
                e('v_add_f32 v%d, v%d, v%d' % (vL2[u], vL2[u], base + k + 1))
            for k in range(4):
                e('v_cvt_pk_bf16_f32 v%d, v%d, v%d' % (vP + b * 8 + u * 4 + k, base + 2 * k, base + 2 * k + 1))
    for u in range(2):
        e('v_add_f32 v%d, v%d, v%d' % (vL[u], vL[u], vL2[u]))
    xreduce(vL, 'v_add_f32')

    c('V phase')
    for b in range(8):
        g.wait([('u', 16 + 2 * b), ('u', 17 + 2 * b)])
        sa, sb = unit_slot[16 + 2 * b], unit_slot[17 + 2 * b]
        rows = [sa + 4 * i for i in range(4)] + [sb + 4 * i for i in range(4)]
        for cc in range(4):
            tb = vVT + (cc % 2) * 8
            for p in range(4):
                e('v_perm_b32 v%d, v%d, v%d, s%d' % (tb + p, rows[2 * p + 1] + cc, rows[2 * p] + cc, sPLO))
            for p in range(4):
                e('v_perm_b32 v%d, v%d, v%d, s%d' % (tb + 4 + p, rows[2 * p + 1] + cc, rows[2 * p] + cc, sPHI))
            for h in range(2):
                j = 2 * cc + h
                for u in range(2):
                    d = vO + (j * 2 + u) * 4
                    mf(d, tb + 4 * h, vP + b * 8 + u * 4, '0' if b == 0 else acc(d))
        free.append(sa); free.append(sb)
        while free and nxt <= 32:
            issue_unit(nxt); nxt += 1
    c('tree PV')
    g.wait([('u', 32)])
    sa = unit_slot[32]
    for cc in range(4):
        tb = vVT + (cc % 2) * 8
        e('v_perm_b32 v%d, v%d, v%d, s%d' % (tb, sa + 4 + cc, sa + cc, sPLO))
        e('v_mov_b32 v%d, 0' % (tb + 1))
        e('v_perm_b32 v%d, v%d, v%d, s%d' % (tb + 2, sa + 4 + cc, sa + cc, sPHI))
        e('v_mov_b32 v%d, 0' % (tb + 3))
        e('s_nop 1')
        for h in range(2):
            j = 2 * cc + h
            for u in range(2):
                d = vO + (j * 2 + u) * 4
                mf(d, tb + 2 * h, vTS + 2 * u, acc(d), k16=True)

    c('combine through LDS')
    ROW = 528; WSZ = 32 * ROW; MLB = NW * WSZ
    vA = vRING; vB = vRING + 1; vC = vRING + 2; vD = vRING + 3
    e('v_and_b32 v%d, 63, v0' % vA)
    e('v_and_b32 v%d, 15, v%d' % (vB, vA))
    e('v_lshrrev_b32 v%d, 4, v%d' % (vC, vA))
    e('v_mul_u32_u24 v%d, %d, v%d' % (vD, ROW, vB))
    e('v_lshl_add_u32 v%d, v%d, 7, v%d' % (vD, vC, vD))
    e('s_mul_i32 s%d, s%d, %d' % (sT, sWAVE, WSZ))
    e('v_add_u32 v%d, s%d, v%d' % (vD, sT, vD))
    e('s_lshl_b32 s%d, s%d, 8' % (sT, sWAVE))
    e('s_add_u32 s%d, s%d, %d' % (sT, sT, MLB))
    e('v_lshlrev_b32 v%d, 3, v%d' % (vB, vB))
    e('v_add_u32 v%d, s%d, v%d' % (vB, sT, vB))
    vML = vRING + 4
    for u in range(2):
        e('v_mov_b32 v%d, v%d' % (vML + 2 * u, vM[u]))
        e('v_mov_b32 v%d, v%d' % (vML + 2 * u + 1, vL[u]))
    for u in range(2):
        e('ds_write_b64 v%d, v[%d:%d] offset:%d' % (vB, vML + 2 * u, vML + 2 * u + 1, u * 128))
    e('s_nop 4')
    for u in range(2):
        for j in range(8):
            d = vO + (j * 2 + u) * 4
            e('ds_write_b128 v%d, v[%d:%d] offset:%d' % (vD, d, d + 3, u * 16 * ROW + j * 16))
    e('s_waitcnt lgkmcnt(0)')
    e('s_barrier')
    e('v_lshrrev_b32 v%d, 4, v0' % vA)
    e('v_and_b32 v%d, 15, v0' % vB)
    e('v_mul_u32_u24 v%d, %d, v%d' % (vC, ROW, vA))
    e('v_lshl_add_u32 v%d, v%d, 5, v%d' % (vC, vB, vC))
    e('v_lshlrev_b32 v%d, 3, v%d' % (vD, vA))
    e('v_add_u32 v%d, %d, v%d' % (vD, MLB, vD))
    vR = 16
    for w in range(NW):
        e('ds_read_b64 v[%d:%d], v%d offset:%d' % (vR + 2 * w, vR + 2 * w + 1, vD, w * 256))
    vX = 32
    vC2 = vRING + 8
    e('v_add_u32 v%d, %d, v%d' % (vC2, 4 * WSZ, vC))
    for w in range(NW):
        base = vC if w < 4 else vC2
        off = (w % 4) * WSZ
        e('ds_read_b128 v[%d:%d], v%d offset:%d' % (vX + 8 * w, vX + 8 * w + 3, base, off))
        e('ds_read_b128 v[%d:%d], v%d offset:%d' % (vX + 8 * w + 4, vX + 8 * w + 7, base, off + 16))
    e('s_waitcnt lgkmcnt(15)')
    e('s_waitcnt lgkmcnt(0)')
    vMM = vRING + 9; vLL = vRING + 10; vF = vRING + 16
    e('v_max_f32 v%d, v%d, v%d' % (vMM, vR, vR + 2))
    for w in range(2, NW, 2):
        e('v_max3_f32 v%d, v%d, v%d, v%d' % (vMM, vMM, vR + 2 * w, vR + 2 * w + 2))
    for w in range(NW):
        e('v_sub_f32 v%d, v%d, v%d' % (vF + w, vR + 2 * w, vMM))
    for w in range(NW):
        e('v_mul_f32 v%d, s%d, v%d' % (vF + w, sC, vF + w))
    for w in range(NW):
        e('v_exp_f32 v%d, v%d' % (vF + w, vF + w))
    e('s_nop 0')
    e('v_mul_f32 v%d, v%d, v%d' % (vLL, vF, vR + 1))
    for w in range(1, NW):
        e('v_fma_f32 v%d, v%d, v%d, v%d' % (vLL, vF + w, vR + 2 * w + 1, vLL))
    e('v_rcp_f32 v%d, v%d' % (vLL, vLL))
    e('s_nop 0')
    for w in range(NW):
        e('v_mul_f32 v%d, v%d, v%d' % (vF + w, vF + w, vLL))
    vY = vRING + 32
    for k in range(8):
        e('v_mul_f32 v%d, v%d, v%d' % (vY + k, vF, vX + k))
    for w in range(1, NW):
        for k in range(8):
            e('v_fma_f32 v%d, v%d, v%d, v%d' % (vY + k, vF + w, vX + 8 * w + k, vY + k))
    e('v_lshrrev_b32 v%d, 2, v%d' % (vC, vB))
    e('v_and_b32 v%d, 3, v%d' % (vD, vB))
    e('v_lshlrev_b32 v%d, 8, v%d' % (vA, vA))
    e('v_lshl_add_u32 v%d, v%d, 6, v%d' % (vA, vC, vA))
    e('v_lshl_add_u32 v%d, v%d, 2, v%d' % (vA, vD, vA))
    for r in range(4):
        e('v_cvt_pk_bf16_f32 v%d, v%d, v%d' % (vY + 8 + r, vY + r, vY + 4 + r))
    for r in range(4):
        e('buffer_store_dword v%d, v%d, s[%d:%d], 0 offen offset:%d' % (vY + 8 + r, vA, sOUT, sOUT + 3, 16 * r))
    g.lab('L_end')
    e('s_endpgm')
    lds = MLB + NW * 256
    out = HDR + '; @launch grid=(256,1,1) block=(512,1,1) lds=%d\n' % lds
    out += '.amdgcn_target "amdgcn-amd-amdhsa--gfx950"\n.text\n.globl %s_kernel\n.p2align 8\n.type %s_kernel,@function\n%s_kernel:\n' % (NAME, NAME, NAME)
    out += '\n'.join(g.l) + '\n'
    out += '''.section .rodata,"a"
.p2align 6
.amdhsa_kernel %s_kernel
  .amdhsa_next_free_vgpr 256
  .amdhsa_next_free_sgpr 64
  .amdhsa_accum_offset 256
  .amdhsa_group_segment_fixed_size 0
  .amdhsa_kernarg_size 72
  .amdhsa_user_sgpr_count 2
  .amdhsa_user_sgpr_kernarg_segment_ptr 1
  .amdhsa_system_sgpr_workgroup_id_x 1
.end_amdhsa_kernel
''' % NAME
    return out

if __name__ == '__main__':
    path = sys.argv[1] if len(sys.argv) > 1 else 'cdna_kernels/%s.s' % NAME
    open(path, 'w').write(gen({}))
```

```python
import sys, struct, math
NAME = "standalone__tree_speculative_verify_tree_attention_over_candidate_token_tree__sampling"
HDR = open('cdna_kernels/%s.s.ref' % NAME).read().split('; @launch')[0]

def f32(x):
    return struct.unpack('<I', struct.pack('<f', x))[0]

class G:
    def __init__(s):
        s.l = []
        s.vm = []
    def e(s, t): s.l.append('    ' + t)
    def c(s, t): s.l.append('    ; ' + t)
    def lab(s, t): s.l.append(t + ':')
    def load(s, t, tag):
        s.e(t); s.vm.append(tag)
    def wait(s, tags):
        idx = [i for i, t in enumerate(s.vm) if t in tags]
        if not idx: return
        last = max(idx)
        n = len(s.vm) - 1 - last
        s.e('s_waitcnt vmcnt(%d)' % n)
        s.vm = s.vm[last + 1:]

def gen(opts):
    NW = 8
    FL = ' ' + opts.get('flags', '')
    g = G()
    e, c = g.e, g.c
    vTID = 0; vKOFF = 1; vVOFF = 2; vADD0 = 3; vADD1 = 4
    vTS = 6
    vM = [10, 11]; vL = [12, 13]; vT0 = 14; vT1 = 15
    vQ = 16
    vS = 48
    vRING = 176
    slots = [vRING + 16 * i for i in range(5)]
    vVT = 32
    vP = vS
    vO = vS + 64
    sWAVE = 3
    sQ, sK, sV, sKT, sVT, sMK, sOUT = 8, 12, 16, 20, 24, 28, 32
    sPTR = 36
    sC = 52; sPLO = 53; sPHI = 54; s4096 = 55; sOFFK = 56; sOFFV = 57; sT = 58; sT2 = 59; sBIG = 60
    SCALE = 128 ** -0.5
    CEXP = SCALE * math.log2(math.e)
    BIG = -1e9 / SCALE

    e('s_cmp_ge_u32 s2, 256')
    e('s_cbranch_scc1 L_end')
    e('s_load_dwordx16 s[%d:%d], s[0:1], 0' % (sPTR, sPTR + 15))
    e('v_lshrrev_b32 v%d, 6, v0' % vT0)
    e('v_and_b32 v%d, 63, v0' % vT1)
    e('v_readfirstlane_b32 s%d, v%d' % (sWAVE, vT0))
    e('v_lshlrev_b32 v%d, 4, v%d' % (vVOFF, vT1))
    e('v_and_b32 v20, 3, v%d' % vT1)
    e('v_lshlrev_b32 v20, 10, v20')
    e('v_bfe_u32 v21, v%d, 2, 2' % vT1)
    e('v_lshlrev_b32 v21, 8, v21')
    e('v_lshrrev_b32 v22, 4, v%d' % vT1)
    e('v_lshlrev_b32 v23, 4, v22')
    e('v_add3_u32 v%d, v20, v21, v23' % vKOFF)
    e('v_and_b32 v20, 15, v%d' % vT1)
    e('v_lshl_add_u32 v10, v20, 8, v23')
    e('v_and_b32 v20, 7, v%d' % vT1)
    e('v_lshlrev_b32 v21, 1, v22')
    e('v_lshl_add_u32 v11, v20, 4, v21')
    e('s_mov_b32 s%d, 0x%08x' % (sC, f32(CEXP)))
    e('s_mov_b32 s%d, 0x05040100' % sPLO)
    e('s_mov_b32 s%d, 0x07060302' % sPHI)
    e('s_mov_b32 s%d, 4096' % s4096)
    e('s_mov_b32 s%d, 0x%08x' % (sBIG, f32(BIG)))
    e('s_waitcnt lgkmcnt(0)')
    def srd(d, p, off_sgpr, nrec):
        e('s_add_u32 s%d, s%d, s%d' % (d, sPTR + 2 * p, off_sgpr))
        e('s_addc_u32 s%d, s%d, 0' % (d + 1, sPTR + 2 * p + 1))
        e('s_mov_b32 s%d, %d' % (d + 2, nrec))
        e('s_mov_b32 s%d, 0x00020000' % (d + 3))
    e('s_lshl_b32 s%d, s2, 19' % sT)
    e('s_lshl_b32 s%d, s%d, 16' % (sT2, sWAVE))
    e('s_add_u32 s%d, s%d, s%d' % (sT, sT, sT2))
    srd(sK, 1, sT, 65536)
    srd(sV, 2, sT, 65536)
    e('s_lshl_b32 s%d, s2, 13' % sT)
    srd(sQ, 0, sT, 8192)
    srd(sOUT, 6, sT, 8192)
    e('s_lshl_b32 s%d, s2, 11' % sT)
    srd(sKT, 3, sT, 2048)
    srd(sVT, 4, sT, 2048)
    e('s_lshr_b32 s%d, s2, 3' % sT)
    e('s_lshl_b32 s%d, s%d, 7' % (sT, sT))
    srd(sMK, 5, sT, 128)
    e('s_mov_b32 s%d, 0' % sOFFK)
    e('s_mov_b32 s%d, 0' % sOFFV)

    free = list(slots)
    unit_slot = {}
    def issue_unit(j):
        sl = free.pop(0)
        unit_slot[j] = sl
        if j < 16:
            for s in range(4):
                g.load('buffer_load_dwordx4 v[%d:%d], v%d, s[%d:%d], s%d offen offset:%d' %
                       (sl + 4 * s, sl + 4 * s + 3, vKOFF, sK, sK + 3, sOFFK, 64 * s) + FL, ('u', j))
            e('s_add_u32 s%d, s%d, 4096' % (sOFFK, sOFFK))
        elif j < 32:
            for i in range(4):
                g.load('buffer_load_dwordx4 v[%d:%d], v%d, s[%d:%d], s%d offen offset:%d' %
                       (sl + 4 * i, sl + 4 * i + 3, vVOFF, sV, sV + 3, sOFFV, 1024 * i) + FL, ('u', j))
            e('s_add_u32 s%d, s%d, 4096' % (sOFFV, sOFFV))
        else:
            for i in range(2):
                g.load('buffer_load_dwordx4 v[%d:%d], v%d, s[%d:%d], 0 offen offset:%d' %
                       (sl + 4 * i, sl + 4 * i + 3, vVOFF, sVT, sVT + 3, 1024 * i), ('u', j))

    c('Q loads')
    for u in range(2):
        for s in range(4):
            r = vQ + (u * 4 + s) * 4
            g.load('buffer_load_dwordx4 v[%d:%d], v10, s[%d:%d], %s offen offset:%d' %
                   (r, r + 3, sQ, sQ + 3, ('s%d' % s4096) if u else '0', 64 * s), 'q')
    c('tree K + mask loads')
    slT = free.pop(0)
    for s in range(4):
        g.load('buffer_load_dwordx4 v[%d:%d], v%d, s[%d:%d], 0 offen offset:%d' %
               (slT + 4 * s, slT + 4 * s + 3, vKOFF, sKT, sKT + 3, 64 * s), 'kt')
    g.load('buffer_load_ushort v%d, v11, s[%d:%d], 0 offen' % (vADD0, sMK, sMK + 3), 'mk')
    g.load('buffer_load_ushort v%d, v11, s[%d:%d], 0 offen offset:8' % (vADD1, sMK, sMK + 3), 'mk')
    nxt = 0
    while free:
        issue_unit(nxt); nxt += 1
    def mf(d, a, b, cc, k16=False):
        if k16:
            e('v_mfma_f32_16x16x16_bf16 v[%d:%d], v[%d:%d], v[%d:%d], %s' % (d, d + 3, a, a + 1, b, b + 1, cc))
        else:
            e('v_mfma_f32_16x16x32_bf16 v[%d:%d], v[%d:%d], v[%d:%d], %s' % (d, d + 3, a, a + 3, b, b + 3, cc))
    def acc(d): return 'v[%d:%d]' % (d, d + 3)
    c('tree QK')
    g.wait(['q', 'kt', 'mk'])
    vTT = vS + 7 * 16
    for u in range(2):
        for s in range(4):
            d = vTT + u * 4
            mf(d, slT + 4 * s, vQ + (u * 4 + s) * 4, '0' if s == 0 else acc(d))
    free.append(slT)
    issue_unit(nxt); nxt += 1
    e('v_lshlrev_b32 v%d, 16, v%d' % (vADD0, vADD0))
    e('v_lshlrev_b32 v%d, 16, v%d' % (vADD1, vADD1))
    e('v_sub_f32 v%d, 1.0, v%d' % (vADD0, vADD0))
    e('v_sub_f32 v%d, 1.0, v%d' % (vADD1, vADD1))
    e('v_mul_f32 v%d, s%d, v%d' % (vADD0, sBIG, vADD0))
    e('v_mul_f32 v%d, s%d, v%d' % (vADD1, sBIG, vADD1))
    e('s_cmp_eq_u32 s%d, 0' % sWAVE)
    e('s_cbranch_scc1 L_w0')
    e('v_mov_b32 v%d, 0xff800000' % vADD0)
    e('v_mov_b32 v%d, 0xff800000' % vADD1)
    g.lab('L_w0')
    e('s_nop 4')
    e('v_add_f32 v%d, v%d, v%d' % (vTS + 0, vTT + 0, vADD0))
    e('v_add_f32 v%d, v%d, v%d' % (vTS + 1, vTT + 1, vADD1))
    e('v_add_f32 v%d, v%d, v%d' % (vTS + 2, vTT + 4, vADD0))
    e('v_add_f32 v%d, v%d, v%d' % (vTS + 3, vTT + 5, vADD1))

    c('K phase')
    for t in range(16):
        b, tau = t // 2, t % 2
        g.wait([('u', t)])
        sl = unit_slot[t]
        for u in range(2):
            d = vS + b * 16 + u * 8 + tau * 4
            for s in range(4):
                mf(d, sl + 4 * s, vQ + (u * 4 + s) * 4, '0' if s == 0 else acc(d))
        free.append(sl)
        if t == 15:
            free.append(vQ)
        while free and nxt <= 32:
            issue_unit(nxt); nxt += 1

    c('softmax: max')
    e('s_nop 7')
    for u in range(2):
        vals = [vS + b * 16 + u * 8 + k for b in range(8) for k in range(8)] + [vTS + 2 * u, vTS + 2 * u + 1]
        e('v_max_f32 v%d, v%d, v%d' % (vM[u], vals[0], vals[1]))
        for k in range(2, len(vals), 2):
            e('v_max3_f32 v%d, v%d, v%d, v%d' % (vM[u], vM[u], vals[k], vals[k + 1]))
    def xreduce(regs, op):
        tmps = [vT0, vT1]
        for sw in ('v_permlane16_swap_b32', 'v_permlane32_swap_b32'):
            for r, t in zip(regs, tmps):
                e('v_mov_b32 v%d, v%d' % (t, r))
            e('s_nop 1')
            for r, t in zip(regs, tmps):
                e('%s v%d, v%d' % (sw, r, t))
            e('s_nop 1')
            for r, t in zip(regs, tmps):
                e('%s v%d, v%d, v%d' % (op, r, r, t))
    xreduce(vM, 'v_max_f32')
    c('softmax: exp / sum / pack')
    vMC = [vVT, vVT + 1]
    for u in range(2):
        e('v_mul_f32 v%d, s%d, v%d' % (vMC[u], sC, vM[u]))
        e('v_mov_b32 v%d, 0' % vL[u])
    for u in range(2):
        for k in range(2):
            r = vTS + 2 * u + k
            e('v_fma_f32 v%d, v%d, s%d, -v%d' % (r, r, sC, vMC[u]))
    for r in range(vTS, vTS + 4):
        e('v_exp_f32 v%d, v%d' % (r, r))
    e('s_nop 0')
    for u in range(2):
        e('v_add_f32 v%d, v%d, v%d' % (vVT + 2 + u, vTS + 2 * u, vTS + 2 * u + 1))
    e('v_cvt_pk_bf16_f32 v%d, v%d, v%d' % (vTS, vTS, vTS + 1))
    e('v_mov_b32 v%d, 0' % (vTS + 1))
    e('v_cvt_pk_bf16_f32 v%d, v%d, v%d' % (vTS + 2, vTS + 2, vTS + 3))
    e('v_mov_b32 v%d, 0' % (vTS + 3))
    vL2 = [vVT + 2, vVT + 3]
    for b in range(8):
        for u in range(2):
            base = vS + b * 16 + u * 8
            for k in range(8):
                e('v_fma_f32 v%d, v%d, s%d, -v%d' % (base + k, base + k, sC, vMC[u]))
            for k in range(8):
                e('v_exp_f32 v%d, v%d' % (base + k, base + k))
            for k in range(0, 8, 2):
                e('v_add_f32 v%d, v%d, v%d' % (vL[u], vL[u], base + k))
                e('v_add_f32 v%d, v%d, v%d' % (vL2[u], vL2[u], base + k + 1))
            for k in range(4):
                e('v_cvt_pk_bf16_f32 v%d, v%d, v%d' % (vP + b * 8 + u * 4 + k, base + 2 * k, base + 2 * k + 1))
    for u in range(2):
        e('v_add_f32 v%d, v%d, v%d' % (vL[u], vL[u], vL2[u]))
    xreduce(vL, 'v_add_f32')

    c('V phase')
    for b in range(8):
        g.wait([('u', 16 + 2 * b), ('u', 17 + 2 * b)])
        sa, sb = unit_slot[16 + 2 * b], unit_slot[17 + 2 * b]
        rows = [sa + 4 * i for i in range(4)] + [sb + 4 * i for i in range(4)]
        for cc in range(4):
            tb = vVT + (cc % 2) * 8
            for p in range(4):
                e('v_perm_b32 v%d, v%d, v%d, s%d' % (tb + p, rows[2 * p + 1] + cc, rows[2 * p] + cc, sPLO))
            for p in range(4):
                e('v_perm_b32 v%d, v%d, v%d, s%d' % (tb + 4 + p, rows[2 * p + 1] + cc, rows[2 * p] + cc, sPHI))
            for h in range(2):
                j = 2 * cc + h
                for u in range(2):
                    d = vO + (j * 2 + u) * 4
                    mf(d, tb + 4 * h, vP + b * 8 + u * 4, '0' if b == 0 else acc(d))
        free.append(sa); free.append(sb)
        while free and nxt <= 32:
            issue_unit(nxt); nxt += 1
    c('tree PV')
    g.wait([('u', 32)])
    sa = unit_slot[32]
    for cc in range(4):
        tb = vVT + (cc % 2) * 8
        e('v_perm_b32 v%d, v%d, v%d, s%d' % (tb, sa + 4 + cc, sa + cc, sPLO))
        e('v_mov_b32 v%d, 0' % (tb + 1))
        e('v_perm_b32 v%d, v%d, v%d, s%d' % (tb + 2, sa + 4 + cc, sa + cc, sPHI))
        e('v_mov_b32 v%d, 0' % (tb + 3))
        e('s_nop 1')
        for h in range(2):
            j = 2 * cc + h
            for u in range(2):
                d = vO + (j * 2 + u) * 4
                mf(d, tb + 2 * h, vTS + 2 * u, acc(d), k16=True)

    c('combine through LDS')
    ROW = 528; WSZ = 32 * ROW; MLB = NW * WSZ
    vA = vRING; vB = vRING + 1; vC = vRING + 2; vD = vRING + 3
    e('v_and_b32 v%d, 63, v0' % vA)
    e('v_and_b32 v%d, 15, v%d' % (vB, vA))
    e('v_lshrrev_b32 v%d, 4, v%d' % (vC, vA))
    e('v_mul_u32_u24 v%d, %d, v%d' % (vD, ROW, vB))
    e('v_lshl_add_u32 v%d, v%d, 7, v%d' % (vD, vC, vD))
    e('s_mul_i32 s%d, s%d, %d' % (sT, sWAVE, WSZ))
    e('v_add_u32 v%d, s%d, v%d' % (vD, sT, vD))
    e('s_lshl_b32 s%d, s%d, 8' % (sT, sWAVE))
    e('s_add_u32 s%d, s%d, %d' % (sT, sT, MLB))
    e('v_lshlrev_b32 v%d, 3, v%d' % (vB, vB))
    e('v_add_u32 v%d, s%d, v%d' % (vB, sT, vB))
    vML = vRING + 4
    for u in range(2):
        e('v_mov_b32 v%d, v%d' % (vML + 2 * u, vM[u]))
        e('v_mov_b32 v%d, v%d' % (vML + 2 * u + 1, vL[u]))
    for u in range(2):
        e('ds_write_b64 v%d, v[%d:%d] offset:%d' % (vB, vML + 2 * u, vML + 2 * u + 1, u * 128))
    e('s_nop 4')
    for u in range(2):
        for j in range(8):
            d = vO + (j * 2 + u) * 4
            e('ds_write_b128 v%d, v[%d:%d] offset:%d' % (vD, d, d + 3, u * 16 * ROW + j * 16))
    e('s_waitcnt lgkmcnt(0)')
    e('s_barrier')
    e('v_lshrrev_b32 v%d, 4, v0' % vA)
    e('v_and_b32 v%d, 15, v0' % vB)
    e('v_mul_u32_u24 v%d, %d, v%d' % (vC, ROW, vA))
    e('v_lshl_add_u32 v%d, v%d, 5, v%d' % (vC, vB, vC))
    e('v_lshlrev_b32 v%d, 3, v%d' % (vD, vA))
    e('v_add_u32 v%d, %d, v%d' % (vD, MLB, vD))
    vR = 16
    for w in range(NW):
        e('ds_read_b64 v[%d:%d], v%d offset:%d' % (vR + 2 * w, vR + 2 * w + 1, vD, w * 256))
    vX = 32
    vC2 = vRING + 8
    e('v_add_u32 v%d, %d, v%d' % (vC2, 4 * WSZ, vC))
    for w in range(NW):
        base = vC if w < 4 else vC2
        off = (w % 4) * WSZ
        e('ds_read_b128 v[%d:%d], v%d offset:%d' % (vX + 8 * w, vX + 8 * w + 3, base, off))
        e('ds_read_b128 v[%d:%d], v%d offset:%d' % (vX + 8 * w + 4, vX + 8 * w + 7, base, off + 16))
    e('s_waitcnt lgkmcnt(15)')
    e('s_waitcnt lgkmcnt(0)')
    vMM = vRING + 9; vLL = vRING + 10; vF = vRING + 16
    e('v_max_f32 v%d, v%d, v%d' % (vMM, vR, vR + 2))
    for w in range(2, NW, 2):
        e('v_max3_f32 v%d, v%d, v%d, v%d' % (vMM, vMM, vR + 2 * w, vR + 2 * w + 2))
    for w in range(NW):
        e('v_sub_f32 v%d, v%d, v%d' % (vF + w, vR + 2 * w, vMM))
    for w in range(NW):
        e('v_mul_f32 v%d, s%d, v%d' % (vF + w, sC, vF + w))
    for w in range(NW):
        e('v_exp_f32 v%d, v%d' % (vF + w, vF + w))
    e('s_nop 0')
    e('v_mul_f32 v%d, v%d, v%d' % (vLL, vF, vR + 1))
    for w in range(1, NW):
        e('v_fma_f32 v%d, v%d, v%d, v%d' % (vLL, vF + w, vR + 2 * w + 1, vLL))
    e('v_rcp_f32 v%d, v%d' % (vLL, vLL))
    e('s_nop 0')
    for w in range(NW):
        e('v_mul_f32 v%d, v%d, v%d' % (vF + w, vF + w, vLL))
    vY = vRING + 32
    for k in range(8):
        e('v_mul_f32 v%d, v%d, v%d' % (vY + k, vF, vX + k))
    for w in range(1, NW):
        for k in range(8):
            e('v_fma_f32 v%d, v%d, v%d, v%d' % (vY + k, vF + w, vX + 8 * w + k, vY + k))
    e('v_lshrrev_b32 v%d, 2, v%d' % (vC, vB))
    e('v_and_b32 v%d, 3, v%d' % (vD, vB))
    e('v_lshlrev_b32 v%d, 8, v%d' % (vA, vA))
    e('v_lshl_add_u32 v%d, v%d, 6, v%d' % (vA, vC, vA))
    e('v_lshl_add_u32 v%d, v%d, 2, v%d' % (vA, vD, vA))
    for r in range(4):
        e('v_cvt_pk_bf16_f32 v%d, v%d, v%d' % (vY + 8 + r, vY + r, vY + 4 + r))
    for r in range(4):
        e('buffer_store_dword v%d, v%d, s[%d:%d], 0 offen offset:%d' % (vY + 8 + r, vA, sOUT, sOUT + 3, 16 * r))
    g.lab('L_end')
    e('s_endpgm')
    lds = MLB + NW * 256
    out = HDR + '; @launch grid=(256,1,1) block=(512,1,1) lds=%d\n' % lds
    out += '.amdgcn_target "amdgcn-amd-amdhsa--gfx950"\n.text\n.globl %s_kernel\n.p2align 8\n.type %s_kernel,@function\n%s_kernel:\n' % (NAME, NAME, NAME)
    out += '\n'.join(g.l) + '\n'
    out += '''.section .rodata,"a"
.p2align 6
.amdhsa_kernel %s_kernel
  .amdhsa_next_free_vgpr 256
  .amdhsa_next_free_sgpr 64
  .amdhsa_accum_offset 256
  .amdhsa_group_segment_fixed_size 0
  .amdhsa_kernarg_size 72
  .amdhsa_user_sgpr_count 2
  .amdhsa_user_sgpr_kernarg_segment_ptr 1
  .amdhsa_system_sgpr_workgroup_id_x 1
.end_amdhsa_kernel
''' % NAME
    return out

if __name__ == '__main__':
    path = sys.argv[1] if len(sys.argv) > 1 else 'cdna_kernels/%s.s' % NAME
    opts = dict(a.split('=') for a in sys.argv[2:])
    opts = {k: v.replace('+', ' ') for k, v in opts.items()}
    open(path, 'w').write(gen(opts))
```

```python
import sys, struct, math
NAME = "standalone__tree_speculative_verify_tree_attention_over_candidate_token_tree__sampling"
HDR = open('cdna_kernels/%s.s.ref' % NAME).read().split('; @launch')[0]

def f32(x):
    return struct.unpack('<I', struct.pack('<f', x))[0]

class G:
    def __init__(s):
        s.l = []
        s.vm = []
    def e(s, t): s.l.append('    ' + t)
    def c(s, t): s.l.append('    ; ' + t)
    def lab(s, t): s.l.append(t + ':')
    def load(s, t, tag):
        s.e(t); s.vm.append(tag)
    def wait(s, tags):
        idx = [i for i, t in enumerate(s.vm) if t in tags]
        if not idx: return
        last = max(idx)
        n = len(s.vm) - 1 - last
        s.e('s_waitcnt vmcnt(%d)' % n)
        s.vm = s.vm[last + 1:]

def gen(opts):
    NW = 8
    FL = ' ' + opts.get('flags', '')
    g = G()
    e, c = g.e, g.c
    vTID = 0; vKOFF = 1; vVOFF = 2; vADD0 = 3; vADD1 = 4
    vTS = 6
    vM = [10, 11]; vL = [12, 13]; vT0 = 14; vT1 = 15
    vQ = 16
    vS = 48
    vRING = 176
    slots = [vRING + 16 * i for i in range(5)]
    vVT = 32
    vP = vS
    vO = vS + 64
    sWAVE = 3
    sQ, sK, sV, sKT, sVT, sMK, sOUT = 8, 12, 16, 20, 24, 28, 32
    sPTR = 36
    sC = 52; sPLO = 53; sPHI = 54; s4096 = 55; sOFFK = 56; sOFFV = 57; sT = 58; sT2 = 59; sBIG = 60
    SCALE = 128 ** -0.5
    CEXP = SCALE * math.log2(math.e)
    BIG = -1e9 / SCALE

    e('s_cmp_ge_u32 s2, 256')
    e('s_cbranch_scc1 L_end')
    e('s_load_dwordx16 s[%d:%d], s[0:1], 0' % (sPTR, sPTR + 15))
    e('v_lshrrev_b32 v%d, 6, v0' % vT0)
    e('v_and_b32 v%d, 63, v0' % vT1)
    e('v_readfirstlane_b32 s%d, v%d' % (sWAVE, vT0))
    e('v_lshlrev_b32 v%d, 4, v%d' % (vVOFF, vT1))
    e('v_and_b32 v20, 3, v%d' % vT1)
    e('v_lshlrev_b32 v20, 10, v20')
    e('v_bfe_u32 v21, v%d, 2, 2' % vT1)
    e('v_lshlrev_b32 v21, 8, v21')
    e('v_lshrrev_b32 v22, 4, v%d' % vT1)
    e('v_lshlrev_b32 v23, 4, v22')
    e('v_add3_u32 v%d, v20, v21, v23' % vKOFF)
    e('v_and_b32 v20, 15, v%d' % vT1)
    e('v_lshl_add_u32 v10, v20, 8, v23')
    e('v_and_b32 v20, 7, v%d' % vT1)
    e('v_lshlrev_b32 v21, 1, v22')
    e('v_lshl_add_u32 v11, v20, 4, v21')
    e('s_mov_b32 s%d, 0x%08x' % (sC, f32(CEXP)))
    e('s_mov_b32 s%d, 0x05040100' % sPLO)
    e('s_mov_b32 s%d, 0x07060302' % sPHI)
    e('s_mov_b32 s%d, 4096' % s4096)
    e('s_mov_b32 s%d, 0x%08x' % (sBIG, f32(BIG)))
    e('s_waitcnt lgkmcnt(0)')
    def srd(d, p, off_sgpr, nrec):
        e('s_add_u32 s%d, s%d, s%d' % (d, sPTR + 2 * p, off_sgpr))
        e('s_addc_u32 s%d, s%d, 0' % (d + 1, sPTR + 2 * p + 1))
        e('s_mov_b32 s%d, %d' % (d + 2, nrec))
        e('s_mov_b32 s%d, 0x00020000' % (d + 3))
    e('s_lshl_b32 s%d, s2, 19' % sT)
    INTER = int(opts.get('inter', 1))
    STEP = 32768 if INTER else 4096
    e('s_lshl_b32 s%d, s%d, %d' % (sT2, sWAVE, 12 if INTER else 16))
    e('s_add_u32 s%d, s%d, s%d' % (sT, sT, sT2))
    srd(sK, 1, sT, (524288 - 28672) if INTER else 65536)
    srd(sV, 2, sT, (524288 - 28672) if INTER else 65536)
    e('s_lshl_b32 s%d, s2, 13' % sT)
    srd(sQ, 0, sT, 8192)
    srd(sOUT, 6, sT, 8192)
    e('s_lshl_b32 s%d, s2, 11' % sT)
    srd(sKT, 3, sT, 2048)
    srd(sVT, 4, sT, 2048)
    e('s_lshr_b32 s%d, s2, 3' % sT)
    e('s_lshl_b32 s%d, s%d, 7' % (sT, sT))
    srd(sMK, 5, sT, 128)
    e('s_mov_b32 s%d, 0' % sOFFK)
    e('s_mov_b32 s%d, 0' % sOFFV)

    free = list(slots)
    unit_slot = {}
    def issue_unit(j):
        sl = free.pop(0)
        unit_slot[j] = sl
        if j < 16:
            for s in range(4):
                g.load('buffer_load_dwordx4 v[%d:%d], v%d, s[%d:%d], s%d offen offset:%d' %
                       (sl + 4 * s, sl + 4 * s + 3, vKOFF, sK, sK + 3, sOFFK, 64 * s) + FL, ('u', j))
            e('s_add_u32 s%d, s%d, %d' % (sOFFK, sOFFK, STEP))
        elif j < 32:
            for i in range(4):
                g.load('buffer_load_dwordx4 v[%d:%d], v%d, s[%d:%d], s%d offen offset:%d' %
                       (sl + 4 * i, sl + 4 * i + 3, vVOFF, sV, sV + 3, sOFFV, 1024 * i) + FL, ('u', j))
            e('s_add_u32 s%d, s%d, %d' % (sOFFV, sOFFV, STEP))
        else:
            for i in range(2):
                g.load('buffer_load_dwordx4 v[%d:%d], v%d, s[%d:%d], 0 offen offset:%d' %
                       (sl + 4 * i, sl + 4 * i + 3, vVOFF, sVT, sVT + 3, 1024 * i), ('u', j))

    c('Q loads')
    for u in range(2):
        for s in range(4):
            r = vQ + (u * 4 + s) * 4
            g.load('buffer_load_dwordx4 v[%d:%d], v10, s[%d:%d], %s offen offset:%d' %
                   (r, r + 3, sQ, sQ + 3, ('s%d' % s4096) if u else '0', 64 * s), 'q')
    c('tree K + mask loads')
    slT = free.pop(0)
    for s in range(4):
        g.load('buffer_load_dwordx4 v[%d:%d], v%d, s[%d:%d], 0 offen offset:%d' %
               (slT + 4 * s, slT + 4 * s + 3, vKOFF, sKT, sKT + 3, 64 * s), 'kt')
    g.load('buffer_load_ushort v%d, v11, s[%d:%d], 0 offen' % (vADD0, sMK, sMK + 3), 'mk')
    g.load('buffer_load_ushort v%d, v11, s[%d:%d], 0 offen offset:8' % (vADD1, sMK, sMK + 3), 'mk')
    nxt = 0
    while free:
        issue_unit(nxt); nxt += 1
    def mf(d, a, b, cc, k16=False):
        if k16:
            e('v_mfma_f32_16x16x16_bf16 v[%d:%d], v[%d:%d], v[%d:%d], %s' % (d, d + 3, a, a + 1, b, b + 1, cc))
        else:
            e('v_mfma_f32_16x16x32_bf16 v[%d:%d], v[%d:%d], v[%d:%d], %s' % (d, d + 3, a, a + 3, b, b + 3, cc))
    def acc(d): return 'v[%d:%d]' % (d, d + 3)
    c('tree QK')
    g.wait(['q', 'kt', 'mk'])
    vTT = vS + 7 * 16
    for u in range(2):
        for s in range(4):
            d = vTT + u * 4
            mf(d, slT + 4 * s, vQ + (u * 4 + s) * 4, '0' if s == 0 else acc(d))
    free.append(slT)
    issue_unit(nxt); nxt += 1
    e('v_lshlrev_b32 v%d, 16, v%d' % (vADD0, vADD0))
    e('v_lshlrev_b32 v%d, 16, v%d' % (vADD1, vADD1))
    e('v_sub_f32 v%d, 1.0, v%d' % (vADD0, vADD0))
    e('v_sub_f32 v%d, 1.0, v%d' % (vADD1, vADD1))
    e('v_mul_f32 v%d, s%d, v%d' % (vADD0, sBIG, vADD0))
    e('v_mul_f32 v%d, s%d, v%d' % (vADD1, sBIG, vADD1))
    e('s_cmp_eq_u32 s%d, 0' % sWAVE)
    e('s_cbranch_scc1 L_w0')
    e('v_mov_b32 v%d, 0xff800000' % vADD0)
    e('v_mov_b32 v%d, 0xff800000' % vADD1)
    g.lab('L_w0')
    e('s_nop 4')
    e('v_add_f32 v%d, v%d, v%d' % (vTS + 0, vTT + 0, vADD0))
    e('v_add_f32 v%d, v%d, v%d' % (vTS + 1, vTT + 1, vADD1))
    e('v_add_f32 v%d, v%d, v%d' % (vTS + 2, vTT + 4, vADD0))
    e('v_add_f32 v%d, v%d, v%d' % (vTS + 3, vTT + 5, vADD1))

    c('K phase')
    for t in range(16):
        b, tau = t // 2, t % 2
        g.wait([('u', t)])
        sl = unit_slot[t]
        for u in range(2):
            d = vS + b * 16 + u * 8 + tau * 4
            for s in range(4):
                mf(d, sl + 4 * s, vQ + (u * 4 + s) * 4, '0' if s == 0 else acc(d))
        free.append(sl)
        if t == 15:
            free.append(vQ)
        while free and nxt <= 32:
            issue_unit(nxt); nxt += 1

    c('softmax: max')
    e('s_nop 7')
    for u in range(2):
        vals = [vS + b * 16 + u * 8 + k for b in range(8) for k in range(8)] + [vTS + 2 * u, vTS + 2 * u + 1]
        e('v_max_f32 v%d, v%d, v%d' % (vM[u], vals[0], vals[1]))
        for k in range(2, len(vals), 2):
            e('v_max3_f32 v%d, v%d, v%d, v%d' % (vM[u], vM[u], vals[k], vals[k + 1]))
    def xreduce(regs, op):
        tmps = [vT0, vT1]
        for sw in ('v_permlane16_swap_b32', 'v_permlane32_swap_b32'):
            for r, t in zip(regs, tmps):
                e('v_mov_b32 v%d, v%d' % (t, r))
            e('s_nop 1')
            for r, t in zip(regs, tmps):
                e('%s v%d, v%d' % (sw, r, t))
            e('s_nop 1')
            for r, t in zip(regs, tmps):
                e('%s v%d, v%d, v%d' % (op, r, r, t))
    xreduce(vM, 'v_max_f32')
    c('softmax: exp / sum / pack')
    vMC = [vVT, vVT + 1]
    for u in range(2):
        e('v_mul_f32 v%d, s%d, v%d' % (vMC[u], sC, vM[u]))
        e('v_mov_b32 v%d, 0' % vL[u])
    for u in range(2):
        for k in range(2):
            r = vTS + 2 * u + k
            e('v_fma_f32 v%d, v%d, s%d, -v%d' % (r, r, sC, vMC[u]))
    for r in range(vTS, vTS + 4):
        e('v_exp_f32 v%d, v%d' % (r, r))
    e('s_nop 0')
    for u in range(2):
        e('v_add_f32 v%d, v%d, v%d' % (vVT + 2 + u, vTS + 2 * u, vTS + 2 * u + 1))
    e('v_cvt_pk_bf16_f32 v%d, v%d, v%d' % (vTS, vTS, vTS + 1))
    e('v_mov_b32 v%d, 0' % (vTS + 1))
    e('v_cvt_pk_bf16_f32 v%d, v%d, v%d' % (vTS + 2, vTS + 2, vTS + 3))
    e('v_mov_b32 v%d, 0' % (vTS + 3))
    vL2 = [vVT + 2, vVT + 3]
    for b in range(8):
        for u in range(2):
            base = vS + b * 16 + u * 8
            for k in range(8):
                e('v_fma_f32 v%d, v%d, s%d, -v%d' % (base + k, base + k, sC, vMC[u]))
            for k in range(8):
                e('v_exp_f32 v%d, v%d' % (base + k, base + k))
            for k in range(0, 8, 2):
                e('v_add_f32 v%d, v%d, v%d' % (vL[u], vL[u], base + k))
                e('v_add_f32 v%d, v%d, v%d' % (vL2[u], vL2[u], base + k + 1))
            for k in range(4):
                e('v_cvt_pk_bf16_f32 v%d, v%d, v%d' % (vP + b * 8 + u * 4 + k, base + 2 * k, base + 2 * k + 1))
    for u in range(2):
        e('v_add_f32 v%d, v%d, v%d' % (vL[u], vL[u], vL2[u]))
    xreduce(vL, 'v_add_f32')

    c('V phase')
    for b in range(8):
        g.wait([('u', 16 + 2 * b), ('u', 17 + 2 * b)])
        sa, sb = unit_slot[16 + 2 * b], unit_slot[17 + 2 * b]
        rows = [sa + 4 * i for i in range(4)] + [sb + 4 * i for i in range(4)]
        for cc in range(4):
            tb = vVT + (cc % 2) * 8
            for p in range(4):
                e('v_perm_b32 v%d, v%d, v%d, s%d' % (tb + p, rows[2 * p + 1] + cc, rows[2 * p] + cc, sPLO))
            for p in range(4):
                e('v_perm_b32 v%d, v%d, v%d, s%d' % (tb + 4 + p, rows[2 * p + 1] + cc, rows[2 * p] + cc, sPHI))
            for h in range(2):
                j = 2 * cc + h
                for u in range(2):
                    d = vO + (j * 2 + u) * 4
                    mf(d, tb + 4 * h, vP + b * 8 + u * 4, '0' if b == 0 else acc(d))
        free.append(sa); free.append(sb)
        while free and nxt <= 32:
            issue_unit(nxt); nxt += 1
    c('tree PV')
    g.wait([('u', 32)])
    sa = unit_slot[32]
    for cc in range(4):
        tb = vVT + (cc % 2) * 8
        e('v_perm_b32 v%d, v%d, v%d, s%d' % (tb, sa + 4 + cc, sa + cc, sPLO))
        e('v_mov_b32 v%d, 0' % (tb + 1))
        e('v_perm_b32 v%d, v%d, v%d, s%d' % (tb + 2, sa + 4 + cc, sa + cc, sPHI))
        e('v_mov_b32 v%d, 0' % (tb + 3))
        e('s_nop 1')
        for h in range(2):
            j = 2 * cc + h
            for u in range(2):
                d = vO + (j * 2 + u) * 4
                mf(d, tb + 2 * h, vTS + 2 * u, acc(d), k16=True)

    c('combine through LDS')
    ROW = 528; WSZ = 32 * ROW; MLB = NW * WSZ
    vA = vRING; vB = vRING + 1; vC = vRING + 2; vD = vRING + 3
    e('v_and_b32 v%d, 63, v0' % vA)
    e('v_and_b32 v%d, 15, v%d' % (vB, vA))
    e('v_lshrrev_b32 v%d, 4, v%d' % (vC, vA))
    e('v_mul_u32_u24 v%d, %d, v%d' % (vD, ROW, vB))
    e('v_lshl_add_u32 v%d, v%d, 7, v%d' % (vD, vC, vD))
    e('s_mul_i32 s%d, s%d, %d' % (sT, sWAVE, WSZ))
    e('v_add_u32 v%d, s%d, v%d' % (vD, sT, vD))
    e('s_lshl_b32 s%d, s%d, 8' % (sT, sWAVE))
    e('s_add_u32 s%d, s%d, %d' % (sT, sT, MLB))
    e('v_lshlrev_b32 v%d, 3, v%d' % (vB, vB))
    e('v_add_u32 v%d, s%d, v%d' % (vB, sT, vB))
    vML = vRING + 4
    for u in range(2):
        e('v_mov_b32 v%d, v%d' % (vML + 2 * u, vM[u]))
        e('v_mov_b32 v%d, v%d' % (vML + 2 * u + 1, vL[u]))
    for u in range(2):
        e('ds_write_b64 v%d, v[%d:%d] offset:%d' % (vB, vML + 2 * u, vML + 2 * u + 1, u * 128))
    e('s_nop 4')
    for u in range(2):
        for j in range(8):
            d = vO + (j * 2 + u) * 4
            e('ds_write_b128 v%d, v[%d:%d] offset:%d' % (vD, d, d + 3, u * 16 * ROW + j * 16))
    e('s_waitcnt lgkmcnt(0)')
    e('s_barrier')
    e('v_lshrrev_b32 v%d, 4, v0' % vA)
    e('v_and_b32 v%d, 15, v0' % vB)
    e('v_mul_u32_u24 v%d, %d, v%d' % (vC, ROW, vA))
    e('v_lshl_add_u32 v%d, v%d, 5, v%d' % (vC, vB, vC))
    e('v_lshlrev_b32 v%d, 3, v%d' % (vD, vA))
    e('v_add_u32 v%d, %d, v%d' % (vD, MLB, vD))
    vR = 16
    for w in range(NW):
        e('ds_read_b64 v[%d:%d], v%d offset:%d' % (vR + 2 * w, vR + 2 * w + 1, vD, w * 256))
    vX = 32
    vC2 = vRING + 8
    e('v_add_u32 v%d, %d, v%d' % (vC2, 4 * WSZ, vC))
    for w in range(NW):
        base = vC if w < 4 else vC2
        off = (w % 4) * WSZ
        e('ds_read_b128 v[%d:%d], v%d offset:%d' % (vX + 8 * w, vX + 8 * w + 3, base, off))
        e('ds_read_b128 v[%d:%d], v%d offset:%d' % (vX + 8 * w + 4, vX + 8 * w + 7, base, off + 16))
    e('s_waitcnt lgkmcnt(15)')
    e('s_waitcnt lgkmcnt(0)')
    vMM = vRING + 9; vLL = vRING + 10; vF = vRING + 16
    e('v_max_f32 v%d, v%d, v%d' % (vMM, vR, vR + 2))
    for w in range(2, NW, 2):
        e('v_max3_f32 v%d, v%d, v%d, v%d' % (vMM, vMM, vR + 2 * w, vR + 2 * w + 2))
    for w in range(NW):
        e('v_sub_f32 v%d, v%d, v%d' % (vF + w, vR + 2 * w, vMM))
    for w in range(NW):
        e('v_mul_f32 v%d, s%d, v%d' % (vF + w, sC, vF + w))
    for w in range(NW):
        e('v_exp_f32 v%d, v%d' % (vF + w, vF + w))
    e('s_nop 0')
    e('v_mul_f32 v%d, v%d, v%d' % (vLL, vF, vR + 1))
    for w in range(1, NW):
        e('v_fma_f32 v%d, v%d, v%d, v%d' % (vLL, vF + w, vR + 2 * w + 1, vLL))
    e('v_rcp_f32 v%d, v%d' % (vLL, vLL))
    e('s_nop 0')
    for w in range(NW):
        e('v_mul_f32 v%d, v%d, v%d' % (vF + w, vF + w, vLL))
    vY = vRING + 32
    for k in range(8):
        e('v_mul_f32 v%d, v%d, v%d' % (vY + k, vF, vX + k))
    for w in range(1, NW):
        for k in range(8):
            e('v_fma_f32 v%d, v%d, v%d, v%d' % (vY + k, vF + w, vX + 8 * w + k, vY + k))
    e('v_lshrrev_b32 v%d, 2, v%d' % (vC, vB))
    e('v_and_b32 v%d, 3, v%d' % (vD, vB))
    e('v_lshlrev_b32 v%d, 8, v%d' % (vA, vA))
    e('v_lshl_add_u32 v%d, v%d, 6, v%d' % (vA, vC, vA))
    e('v_lshl_add_u32 v%d, v%d, 2, v%d' % (vA, vD, vA))
    for r in range(4):
        e('v_cvt_pk_bf16_f32 v%d, v%d, v%d' % (vY + 8 + r, vY + r, vY + 4 + r))
    for r in range(4):
        e('buffer_store_dword v%d, v%d, s[%d:%d], 0 offen offset:%d' % (vY + 8 + r, vA, sOUT, sOUT + 3, 16 * r))
    g.lab('L_end')
    e('s_endpgm')
    lds = MLB + NW * 256
    out = HDR + '; @launch grid=(256,1,1) block=(512,1,1) lds=%d\n' % lds
    out += '.amdgcn_target "amdgcn-amd-amdhsa--gfx950"\n.text\n.globl %s_kernel\n.p2align 8\n.type %s_kernel,@function\n%s_kernel:\n' % (NAME, NAME, NAME)
    out += '\n'.join(g.l) + '\n'
    out += '''.section .rodata,"a"
.p2align 6
.amdhsa_kernel %s_kernel
  .amdhsa_next_free_vgpr 256
  .amdhsa_next_free_sgpr 64
  .amdhsa_accum_offset 256
  .amdhsa_group_segment_fixed_size 0
  .amdhsa_kernarg_size 72
  .amdhsa_user_sgpr_count 2
  .amdhsa_user_sgpr_kernarg_segment_ptr 1
  .amdhsa_system_sgpr_workgroup_id_x 1
.end_amdhsa_kernel
''' % NAME
    return out

if __name__ == '__main__':
    path = sys.argv[1] if len(sys.argv) > 1 else 'cdna_kernels/%s.s' % NAME
    opts = dict(a.split('=') for a in sys.argv[2:])
    opts = {k: v.replace('+', ' ') for k, v in opts.items()}
    open(path, 'w').write(gen(opts))
```

```python
import sys, struct, math
NAME = "standalone__tree_speculative_verify_tree_attention_over_candidate_token_tree__sampling"
HDR = open('cdna_kernels/%s.s.ref' % NAME).read().split('; @launch')[0]

def f32(x):
    return struct.unpack('<I', struct.pack('<f', x))[0]

class G:
    def __init__(s):
        s.l = []
        s.vm = []
    def e(s, t): s.l.append('    ' + t)
    def c(s, t): s.l.append('    ; ' + t)
    def lab(s, t): s.l.append(t + ':')
    def load(s, t, tag):
        s.e(t); s.vm.append(tag)
    def wait(s, tags):
        idx = [i for i, t in enumerate(s.vm) if t in tags]
        if not idx: return
        last = max(idx)
        n = len(s.vm) - 1 - last
        s.e('s_waitcnt vmcnt(%d)' % n)
        s.vm = s.vm[last + 1:]

def gen(opts):
    NW = 8
    FLK = ' ' + opts.get('fk', 'nt')
    FLV = ' ' + opts.get('fv', 'nt')
    g = G()
    e, c = g.e, g.c
    vTID = 0; vKOFF = 1; vVOFF = 2; vADD0 = 3; vADD1 = 4
    vTS = 6
    vM = [10, 11]; vL = [12, 13]; vT0 = 14; vT1 = 15
    vQ = 16
    vS = 48
    vRING = 176
    slots = [vRING + 16 * i for i in range(5)]
    vVT = 32
    vP = vS
    vO = vS + 64
    sWAVE = 3
    sQ, sK, sV, sKT, sVT, sMK, sOUT = 8, 12, 16, 20, 24, 28, 32
    sPTR = 36
    sC = 52; sPLO = 53; sPHI = 54; s4096 = 55; sOFFK = 56; sOFFV = 57; sT = 58; sT2 = 59; sBIG = 60
    SCALE = 128 ** -0.5
    CEXP = SCALE * math.log2(math.e)
    BIG = -1e9 / SCALE

    e('s_cmp_ge_u32 s2, 256')
    e('s_cbranch_scc1 L_end')
    e('s_load_dwordx16 s[%d:%d], s[0:1], 0' % (sPTR, sPTR + 15))
    e('v_lshrrev_b32 v%d, 6, v0' % vT0)
    e('v_and_b32 v%d, 63, v0' % vT1)
    e('v_readfirstlane_b32 s%d, v%d' % (sWAVE, vT0))
    e('v_lshlrev_b32 v%d, 4, v%d' % (vVOFF, vT1))
    e('v_and_b32 v20, 3, v%d' % vT1)
    e('v_lshlrev_b32 v20, 10, v20')
    e('v_bfe_u32 v21, v%d, 2, 2' % vT1)
    e('v_lshlrev_b32 v21, 8, v21')
    e('v_lshrrev_b32 v22, 4, v%d' % vT1)
    e('v_lshlrev_b32 v23, 4, v22')
    e('v_add3_u32 v%d, v20, v21, v23' % vKOFF)
    e('v_and_b32 v20, 15, v%d' % vT1)
    e('v_lshl_add_u32 v10, v20, 8, v23')
    e('v_and_b32 v20, 7, v%d' % vT1)
    e('v_lshlrev_b32 v21, 1, v22')
    e('v_lshl_add_u32 v11, v20, 4, v21')
    e('s_mov_b32 s%d, 0x%08x' % (sC, f32(CEXP)))
    e('s_mov_b32 s%d, 0x05040100' % sPLO)
    e('s_mov_b32 s%d, 0x07060302' % sPHI)
    e('s_mov_b32 s%d, 4096' % s4096)
    e('s_mov_b32 s%d, 0x%08x' % (sBIG, f32(BIG)))
    e('s_waitcnt lgkmcnt(0)')
    def srd(d, p, off_sgpr, nrec):
        e('s_add_u32 s%d, s%d, s%d' % (d, sPTR + 2 * p, off_sgpr))
        e('s_addc_u32 s%d, s%d, 0' % (d + 1, sPTR + 2 * p + 1))
        e('s_mov_b32 s%d, %d' % (d + 2, nrec))
        e('s_mov_b32 s%d, 0x00020000' % (d + 3))
    e('s_lshl_b32 s%d, s2, 19' % sT)
    INTER = int(opts.get('inter', 1))
    STEP = 32768 if INTER else 4096
    e('s_lshl_b32 s%d, s%d, %d' % (sT2, sWAVE, 12 if INTER else 16))
    e('s_add_u32 s%d, s%d, s%d' % (sT, sT, sT2))
    srd(sK, 1, sT, (524288 - 28672) if INTER else 65536)
    srd(sV, 2, sT, (524288 - 28672) if INTER else 65536)
    e('s_lshl_b32 s%d, s2, 13' % sT)
    srd(sQ, 0, sT, 8192)
    srd(sOUT, 6, sT, 8192)
    e('s_lshl_b32 s%d, s2, 11' % sT)
    srd(sKT, 3, sT, 2048)
    srd(sVT, 4, sT, 2048)
    e('s_lshr_b32 s%d, s2, 3' % sT)
    e('s_lshl_b32 s%d, s%d, 7' % (sT, sT))
    srd(sMK, 5, sT, 128)
    e('s_mov_b32 s%d, 0' % sOFFK)
    e('s_mov_b32 s%d, 0' % sOFFV)

    free = list(slots)
    unit_slot = {}
    def issue_unit(j):
        sl = free.pop(0)
        unit_slot[j] = sl
        if j < 16:
            for s in range(4):
                g.load('buffer_load_dwordx4 v[%d:%d], v%d, s[%d:%d], s%d offen offset:%d' %
                       (sl + 4 * s, sl + 4 * s + 3, vKOFF, sK, sK + 3, sOFFK, 64 * s) + FLK, ('u', j))
            e('s_add_u32 s%d, s%d, %d' % (sOFFK, sOFFK, STEP))
        elif j < 32:
            for i in range(4):
                g.load('buffer_load_dwordx4 v[%d:%d], v%d, s[%d:%d], s%d offen offset:%d' %
                       (sl + 4 * i, sl + 4 * i + 3, vVOFF, sV, sV + 3, sOFFV, 1024 * i) + FLV, ('u', j))
            e('s_add_u32 s%d, s%d, %d' % (sOFFV, sOFFV, STEP))
        else:
            for i in range(2):
                g.load('buffer_load_dwordx4 v[%d:%d], v%d, s[%d:%d], 0 offen offset:%d' %
                       (sl + 4 * i, sl + 4 * i + 3, vVOFF, sVT, sVT + 3, 1024 * i), ('u', j))

    c('Q loads')
    for u in range(2):
        for s in range(4):
            r = vQ + (u * 4 + s) * 4
            g.load('buffer_load_dwordx4 v[%d:%d], v10, s[%d:%d], %s offen offset:%d' %
                   (r, r + 3, sQ, sQ + 3, ('s%d' % s4096) if u else '0', 64 * s), 'q')
    c('tree K + mask loads')
    slT = free.pop(0)
    for s in range(4):
        g.load('buffer_load_dwordx4 v[%d:%d], v%d, s[%d:%d], 0 offen offset:%d' %
               (slT + 4 * s, slT + 4 * s + 3, vKOFF, sKT, sKT + 3, 64 * s), 'kt')
    g.load('buffer_load_ushort v%d, v11, s[%d:%d], 0 offen' % (vADD0, sMK, sMK + 3), 'mk')
    g.load('buffer_load_ushort v%d, v11, s[%d:%d], 0 offen offset:8' % (vADD1, sMK, sMK + 3), 'mk')
    nxt = 0
    while free:
        issue_unit(nxt); nxt += 1
    def mf(d, a, b, cc, k16=False):
        if k16:
            e('v_mfma_f32_16x16x16_bf16 v[%d:%d], v[%d:%d], v[%d:%d], %s' % (d, d + 3, a, a + 1, b, b + 1, cc))
        else:
            e('v_mfma_f32_16x16x32_bf16 v[%d:%d], v[%d:%d], v[%d:%d], %s' % (d, d + 3, a, a + 3, b, b + 3, cc))
    def acc(d): return 'v[%d:%d]' % (d, d + 3)
    c('tree QK')
    g.wait(['q', 'kt', 'mk'])
    vTT = vS + 7 * 16
    for u in range(2):
        for s in range(4):
            d = vTT + u * 4
            mf(d, slT + 4 * s, vQ + (u * 4 + s) * 4, '0' if s == 0 else acc(d))
    free.append(slT)
    issue_unit(nxt); nxt += 1
    e('v_lshlrev_b32 v%d, 16, v%d' % (vADD0, vADD0))
    e('v_lshlrev_b32 v%d, 16, v%d' % (vADD1, vADD1))
    e('v_sub_f32 v%d, 1.0, v%d' % (vADD0, vADD0))
    e('v_sub_f32 v%d, 1.0, v%d' % (vADD1, vADD1))
    e('v_mul_f32 v%d, s%d, v%d' % (vADD0, sBIG, vADD0))
    e('v_mul_f32 v%d, s%d, v%d' % (vADD1, sBIG, vADD1))
    e('s_cmp_eq_u32 s%d, 0' % sWAVE)
    e('s_cbranch_scc1 L_w0')
    e('v_mov_b32 v%d, 0xff800000' % vADD0)
    e('v_mov_b32 v%d, 0xff800000' % vADD1)
    g.lab('L_w0')
    e('s_nop 4')
    e('v_add_f32 v%d, v%d, v%d' % (vTS + 0, vTT + 0, vADD0))
    e('v_add_f32 v%d, v%d, v%d' % (vTS + 1, vTT + 1, vADD1))
    e('v_add_f32 v%d, v%d, v%d' % (vTS + 2, vTT + 4, vADD0))
    e('v_add_f32 v%d, v%d, v%d' % (vTS + 3, vTT + 5, vADD1))

    c('K phase')
    for t in range(16):
        b, tau = t // 2, t % 2
        g.wait([('u', t)])
        sl = unit_slot[t]
        for u in range(2):
            d = vS + b * 16 + u * 8 + tau * 4
            for s in range(4):
                mf(d, sl + 4 * s, vQ + (u * 4 + s) * 4, '0' if s == 0 else acc(d))
        free.append(sl)
        if t == 15:
            free.append(vQ)
        while free and nxt <= 32:
            issue_unit(nxt); nxt += 1

    c('softmax: max')
    e('s_nop 7')
    for u in range(2):
        vals = [vS + b * 16 + u * 8 + k for b in range(8) for k in range(8)] + [vTS + 2 * u, vTS + 2 * u + 1]
        e('v_max_f32 v%d, v%d, v%d' % (vM[u], vals[0], vals[1]))
        for k in range(2, len(vals), 2):
            e('v_max3_f32 v%d, v%d, v%d, v%d' % (vM[u], vM[u], vals[k], vals[k + 1]))
    def xreduce(regs, op):
        tmps = [vT0, vT1]
        for sw in ('v_permlane16_swap_b32', 'v_permlane32_swap_b32'):
            for r, t in zip(regs, tmps):
                e('v_mov_b32 v%d, v%d' % (t, r))
            e('s_nop 1')
            for r, t in zip(regs, tmps):
                e('%s v%d, v%d' % (sw, r, t))
            e('s_nop 1')
            for r, t in zip(regs, tmps):
                e('%s v%d, v%d, v%d' % (op, r, r, t))
    xreduce(vM, 'v_max_f32')
    c('softmax: exp / sum / pack')
    vMC = [vVT, vVT + 1]
    for u in range(2):
        e('v_mul_f32 v%d, s%d, v%d' % (vMC[u], sC, vM[u]))
        e('v_mov_b32 v%d, 0' % vL[u])
    for u in range(2):
        for k in range(2):
            r = vTS + 2 * u + k
            e('v_fma_f32 v%d, v%d, s%d, -v%d' % (r, r, sC, vMC[u]))
    for r in range(vTS, vTS + 4):
        e('v_exp_f32 v%d, v%d' % (r, r))
    e('s_nop 0')
    for u in range(2):
        e('v_add_f32 v%d, v%d, v%d' % (vVT + 2 + u, vTS + 2 * u, vTS + 2 * u + 1))
    e('v_cvt_pk_bf16_f32 v%d, v%d, v%d' % (vTS, vTS, vTS + 1))
    e('v_mov_b32 v%d, 0' % (vTS + 1))
    e('v_cvt_pk_bf16_f32 v%d, v%d, v%d' % (vTS + 2, vTS + 2, vTS + 3))
    e('v_mov_b32 v%d, 0' % (vTS + 3))
    vL2 = [vVT + 2, vVT + 3]
    for b in range(8):
        for u in range(2):
            base = vS + b * 16 + u * 8
            for k in range(8):
                e('v_fma_f32 v%d, v%d, s%d, -v%d' % (base + k, base + k, sC, vMC[u]))
            for k in range(8):
                e('v_exp_f32 v%d, v%d' % (base + k, base + k))
            for k in range(0, 8, 2):
                e('v_add_f32 v%d, v%d, v%d' % (vL[u], vL[u], base + k))
                e('v_add_f32 v%d, v%d, v%d' % (vL2[u], vL2[u], base + k + 1))
            for k in range(4):
                e('v_cvt_pk_bf16_f32 v%d, v%d, v%d' % (vP + b * 8 + u * 4 + k, base + 2 * k, base + 2 * k + 1))
    for u in range(2):
        e('v_add_f32 v%d, v%d, v%d' % (vL[u], vL[u], vL2[u]))
    xreduce(vL, 'v_add_f32')

    c('V phase')
    for b in range(8):
        g.wait([('u', 16 + 2 * b), ('u', 17 + 2 * b)])
        sa, sb = unit_slot[16 + 2 * b], unit_slot[17 + 2 * b]
        rows = [sa + 4 * i for i in range(4)] + [sb + 4 * i for i in range(4)]
        for cc in range(4):
            tb = vVT + (cc % 2) * 8
            for p in range(4):
                e('v_perm_b32 v%d, v%d, v%d, s%d' % (tb + p, rows[2 * p + 1] + cc, rows[2 * p] + cc, sPLO))
            for p in range(4):
                e('v_perm_b32 v%d, v%d, v%d, s%d' % (tb + 4 + p, rows[2 * p + 1] + cc, rows[2 * p] + cc, sPHI))
            for h in range(2):
                j = 2 * cc + h
                for u in range(2):
                    d = vO + (j * 2 + u) * 4
                    mf(d, tb + 4 * h, vP + b * 8 + u * 4, '0' if b == 0 else acc(d))
        free.append(sa); free.append(sb)
        while free and nxt <= 32:
            issue_unit(nxt); nxt += 1
    c('tree PV')
    g.wait([('u', 32)])
    sa = unit_slot[32]
    for cc in range(4):
        tb = vVT + (cc % 2) * 8
        e('v_perm_b32 v%d, v%d, v%d, s%d' % (tb, sa + 4 + cc, sa + cc, sPLO))
        e('v_mov_b32 v%d, 0' % (tb + 1))
        e('v_perm_b32 v%d, v%d, v%d, s%d' % (tb + 2, sa + 4 + cc, sa + cc, sPHI))
        e('v_mov_b32 v%d, 0' % (tb + 3))
        e('s_nop 1')
        for h in range(2):
            j = 2 * cc + h
            for u in range(2):
                d = vO + (j * 2 + u) * 4
                mf(d, tb + 2 * h, vTS + 2 * u, acc(d), k16=True)

    c('combine through LDS')
    ROW = 528; WSZ = 32 * ROW; MLB = NW * WSZ
    vA = vRING; vB = vRING + 1; vC = vRING + 2; vD = vRING + 3
    e('v_and_b32 v%d, 63, v0' % vA)
    e('v_and_b32 v%d, 15, v%d' % (vB, vA))
    e('v_lshrrev_b32 v%d, 4, v%d' % (vC, vA))
    e('v_mul_u32_u24 v%d, %d, v%d' % (vD, ROW, vB))
    e('v_lshl_add_u32 v%d, v%d, 7, v%d' % (vD, vC, vD))
    e('s_mul_i32 s%d, s%d, %d' % (sT, sWAVE, WSZ))
    e('v_add_u32 v%d, s%d, v%d' % (vD, sT, vD))
    e('s_lshl_b32 s%d, s%d, 8' % (sT, sWAVE))
    e('s_add_u32 s%d, s%d, %d' % (sT, sT, MLB))
    e('v_lshlrev_b32 v%d, 3, v%d' % (vB, vB))
    e('v_add_u32 v%d, s%d, v%d' % (vB, sT, vB))
    vML = vRING + 4
    for u in range(2):
        e('v_mov_b32 v%d, v%d' % (vML + 2 * u, vM[u]))
        e('v_mov_b32 v%d, v%d' % (vML + 2 * u + 1, vL[u]))
    for u in range(2):
        e('ds_write_b64 v%d, v[%d:%d] offset:%d' % (vB, vML + 2 * u, vML + 2 * u + 1, u * 128))
    e('s_nop 4')
    for u in range(2):
        for j in range(8):
            d = vO + (j * 2 + u) * 4
            e('ds_write_b128 v%d, v[%d:%d] offset:%d' % (vD, d, d + 3, u * 16 * ROW + j * 16))
    e('s_waitcnt lgkmcnt(0)')
    e('s_barrier')
    e('v_lshrrev_b32 v%d, 4, v0' % vA)
    e('v_and_b32 v%d, 15, v0' % vB)
    e('v_mul_u32_u24 v%d, %d, v%d' % (vC, ROW, vA))
    e('v_lshl_add_u32 v%d, v%d, 5, v%d' % (vC, vB, vC))
    e('v_lshlrev_b32 v%d, 3, v%d' % (vD, vA))
    e('v_add_u32 v%d, %d, v%d' % (vD, MLB, vD))
    vR = 16
    for w in range(NW):
        e('ds_read_b64 v[%d:%d], v%d offset:%d' % (vR + 2 * w, vR + 2 * w + 1, vD, w * 256))
    vX = 32
    vC2 = vRING + 8
    e('v_add_u32 v%d, %d, v%d' % (vC2, 4 * WSZ, vC))
    for w in range(NW):
        base = vC if w < 4 else vC2
        off = (w % 4) * WSZ
        e('ds_read_b128 v[%d:%d], v%d offset:%d' % (vX + 8 * w, vX + 8 * w + 3, base, off))
        e('ds_read_b128 v[%d:%d], v%d offset:%d' % (vX + 8 * w + 4, vX + 8 * w + 7, base, off + 16))
    e('s_waitcnt lgkmcnt(15)')
    e('s_waitcnt lgkmcnt(0)')
    vMM = vRING + 9; vLL = vRING + 10; vF = vRING + 16
    e('v_max_f32 v%d, v%d, v%d' % (vMM, vR, vR + 2))
    for w in range(2, NW, 2):
        e('v_max3_f32 v%d, v%d, v%d, v%d' % (vMM, vMM, vR + 2 * w, vR + 2 * w + 2))
    for w in range(NW):
        e('v_sub_f32 v%d, v%d, v%d' % (vF + w, vR + 2 * w, vMM))
    for w in range(NW):
        e('v_mul_f32 v%d, s%d, v%d' % (vF + w, sC, vF + w))
    for w in range(NW):
        e('v_exp_f32 v%d, v%d' % (vF + w, vF + w))
    e('s_nop 0')
    e('v_mul_f32 v%d, v%d, v%d' % (vLL, vF, vR + 1))
    for w in range(1, NW):
        e('v_fma_f32 v%d, v%d, v%d, v%d' % (vLL, vF + w, vR + 2 * w + 1, vLL))
    e('v_rcp_f32 v%d, v%d' % (vLL, vLL))
    e('s_nop 0')
    for w in range(NW):
        e('v_mul_f32 v%d, v%d, v%d' % (vF + w, vF + w, vLL))
    vY = vRING + 32
    for k in range(8):
        e('v_mul_f32 v%d, v%d, v%d' % (vY + k, vF, vX + k))
    for w in range(1, NW):
        for k in range(8):
            e('v_fma_f32 v%d, v%d, v%d, v%d' % (vY + k, vF + w, vX + 8 * w + k, vY + k))
    e('v_lshrrev_b32 v%d, 2, v%d' % (vC, vB))
    e('v_and_b32 v%d, 3, v%d' % (vD, vB))
    e('v_lshlrev_b32 v%d, 8, v%d' % (vA, vA))
    e('v_lshl_add_u32 v%d, v%d, 6, v%d' % (vA, vC, vA))
    e('v_lshl_add_u32 v%d, v%d, 2, v%d' % (vA, vD, vA))
    for r in range(4):
        e('v_cvt_pk_bf16_f32 v%d, v%d, v%d' % (vY + 8 + r, vY + r, vY + 4 + r))
    for r in range(4):
        e('buffer_store_dword v%d, v%d, s[%d:%d], 0 offen offset:%d' % (vY + 8 + r, vA, sOUT, sOUT + 3, 16 * r))
    g.lab('L_end')
    e('s_endpgm')
    lds = MLB + NW * 256
    out = HDR + '; @launch grid=(256,1,1) block=(512,1,1) lds=%d\n' % lds
    out += '.amdgcn_target "amdgcn-amd-amdhsa--gfx950"\n.text\n.globl %s_kernel\n.p2align 8\n.type %s_kernel,@function\n%s_kernel:\n' % (NAME, NAME, NAME)
    out += '\n'.join(g.l) + '\n'
    out += '''.section .rodata,"a"
.p2align 6
.amdhsa_kernel %s_kernel
  .amdhsa_next_free_vgpr 256
  .amdhsa_next_free_sgpr 64
  .amdhsa_accum_offset 256
  .amdhsa_group_segment_fixed_size 0
  .amdhsa_kernarg_size 72
  .amdhsa_user_sgpr_count 2
  .amdhsa_user_sgpr_kernarg_segment_ptr 1
  .amdhsa_system_sgpr_workgroup_id_x 1
.end_amdhsa_kernel
''' % NAME
    return out

if __name__ == '__main__':
    path = sys.argv[1] if len(sys.argv) > 1 else 'cdna_kernels/%s.s' % NAME
    opts = dict(a.split('=') for a in sys.argv[2:])
    opts = {k: v.replace('+', ' ') for k, v in opts.items()}
    open(path, 'w').write(gen(opts))
```

```python
import sys, struct, math
NAME = "standalone__tree_speculative_verify_tree_attention_over_candidate_token_tree__sampling"
HDR = open('cdna_kernels/%s.s.ref' % NAME).read().split('; @launch')[0]

def f32(x):
    return struct.unpack('<I', struct.pack('<f', x))[0]

class G:
    def __init__(s):
        s.l = []
        s.vm = []
    def e(s, t): s.l.append('    ' + t)
    def c(s, t): s.l.append('    ; ' + t)
    def lab(s, t): s.l.append(t + ':')
    def load(s, t, tag):
        s.e(t); s.vm.append(tag)
    def wait(s, tags):
        idx = [i for i, t in enumerate(s.vm) if t in tags]
        if not idx: return
        last = max(idx)
        n = len(s.vm) - 1 - last
        s.e('s_waitcnt vmcnt(%d)' % n)
        s.vm = s.vm[last + 1:]

def gen(opts):
    NW = 8
    BAR = int(opts.get('bar', 0))
    FLK = ' ' + opts.get('fk', 'nt')
    FLV = ' ' + opts.get('fv', 'nt')
    g = G()
    e, c = g.e, g.c
    vTID = 0; vKOFF = 1; vVOFF = 2; vADD0 = 3; vADD1 = 4
    vTS = 6
    vM = [10, 11]; vL = [12, 13]; vT0 = 14; vT1 = 15
    vQ = 16
    vS = 48
    vRING = 176
    KP = int(opts.get('kp', 2))
    vKOFF1 = 5
    if KP == 2:
        slots = [vRING + 16 * i for i in range(4)]
        vTMP = vRING + 64
    else:
        slots = [vRING + 16 * i for i in range(5)]
    vVT = 32
    vP = vS
    vO = vS + 64
    sWAVE = 3
    sQ, sK, sV, sKT, sVT, sMK, sOUT = 8, 12, 16, 20, 24, 28, 32
    sPTR = 36
    sC = 52; sPLO = 53; sPHI = 54; s4096 = 55; sOFFK = 56; sOFFV = 57; sT = 58; sT2 = 59; sBIG = 60
    SCALE = 128 ** -0.5
    CEXP = SCALE * math.log2(math.e)
    BIG = -1e9 / SCALE

    STAMP = int(opts.get('stamp', 0))
    nst = [0]
    def stamp():
        if not STAMP: return
        e('s_memrealtime s[%d:%d]' % (64 + 2 * nst[0], 65 + 2 * nst[0]))
        e('s_waitcnt lgkmcnt(0)')
        nst[0] += 1
    e('s_cmp_ge_u32 s2, 256')
    e('s_cbranch_scc1 L_end')
    stamp()
    e('s_load_dwordx16 s[%d:%d], s[0:1], 0' % (sPTR, sPTR + 15))
    e('v_lshrrev_b32 v%d, 6, v0' % vT0)
    e('v_and_b32 v%d, 63, v0' % vT1)
    e('v_readfirstlane_b32 s%d, v%d' % (sWAVE, vT0))
    e('v_lshlrev_b32 v%d, 4, v%d' % (vVOFF, vT1))
    e('v_and_b32 v20, 3, v%d' % vT1)
    e('v_lshlrev_b32 v20, 10, v20')
    e('v_bfe_u32 v21, v%d, 2, 2' % vT1)
    e('v_lshlrev_b32 v21, 8, v21')
    e('v_lshrrev_b32 v22, 4, v%d' % vT1)
    e('v_lshlrev_b32 v23, 4, v22')
    e('v_add3_u32 v%d, v20, v21, v23' % vKOFF)
    if KP == 2:
        for ll, dst in ((0, vKOFF), (1, vKOFF1)):
            e('v_and_b32 v20, 14, v%d' % vT1); e('v_or_b32 v20, %d, v20' % ll)
            e('v_and_b32 v21, 3, v20'); e('v_lshlrev_b32 v21, 10, v21'); e('v_bfe_u32 v20, v20, 2, 2'); e('v_lshl_add_u32 v21, v20, 8, v21')
            e('v_and_b32 v20, 1, v%d' % vT1); e('v_xor_b32 v20, %d, v20' % ll); e('v_lshl_add_u32 v21, v20, 6, v21')
            e('v_add_u32 v%d, v21, v23' % dst)
        e('s_mov_b32 s62, 0xaaaaaaaa'); e('s_mov_b32 s63, 0xaaaaaaaa')
    e('v_and_b32 v20, 15, v%d' % vT1)
    e('v_lshl_add_u32 v10, v20, 8, v23')
    e('v_and_b32 v20, 7, v%d' % vT1)
    e('v_lshlrev_b32 v21, 1, v22')
    e('v_lshl_add_u32 v11, v20, 4, v21')
    e('s_mov_b32 s%d, 0x%08x' % (sC, f32(CEXP)))
    e('s_mov_b32 s%d, 0x05040100' % sPLO)
    e('s_mov_b32 s%d, 0x07060302' % sPHI)
    e('s_mov_b32 s%d, 4096' % s4096)
    e('s_mov_b32 s%d, 0x%08x' % (sBIG, f32(BIG)))
    e('s_waitcnt lgkmcnt(0)')
    def srd(d, p, off_sgpr, nrec):
        e('s_add_u32 s%d, s%d, s%d' % (d, sPTR + 2 * p, off_sgpr))
        e('s_addc_u32 s%d, s%d, 0' % (d + 1, sPTR + 2 * p + 1))
        e('s_mov_b32 s%d, %d' % (d + 2, nrec))
        e('s_mov_b32 s%d, 0x00020000' % (d + 3))
    e('s_lshl_b32 s%d, s2, 19' % sT)
    INTER = int(opts.get('inter', 1))
    STEP = 32768 if INTER else 4096
    e('s_lshl_b32 s%d, s%d, %d' % (sT2, sWAVE, 12 if INTER else 16))
    e('s_add_u32 s%d, s%d, s%d' % (sT, sT, sT2))
    srd(sK, 1, sT, (524288 - 28672) if INTER else 65536)
    srd(sV, 2, sT, (524288 - 28672) if INTER else 65536)
    e('s_lshl_b32 s%d, s2, 13' % sT)
    srd(sQ, 0, sT, 8192)
    srd(sOUT, 6, sT, 8192)
    e('s_lshl_b32 s%d, s2, 11' % sT)
    srd(sKT, 3, sT, 2048)
    srd(sVT, 4, sT, 2048)
    e('s_lshr_b32 s%d, s2, 3' % sT)
    e('s_lshl_b32 s%d, s%d, 7' % (sT, sT))
    srd(sMK, 5, sT, 128)
    e('s_mov_b32 s%d, 0' % sOFFK)
    e('s_mov_b32 s%d, 0' % sOFFV)

    def kvo(s): return (vKOFF1 if (s & 1) else vKOFF) if KP == 2 else vKOFF
    def kio(s): return 128 * (s >> 1) if KP == 2 else 64 * s
    free = list(slots)
    unit_slot = {}
    def issue_unit(j):
        sl = free.pop(0)
        unit_slot[j] = sl
        if j < 16:
            for s in range(4):
                g.load('buffer_load_dwordx4 v[%d:%d], v%d, s[%d:%d], s%d offen offset:%d' %
                       (sl + 4 * s, sl + 4 * s + 3, kvo(s), sK, sK + 3, sOFFK, kio(s)) + FLK, ('u', j))
            e('s_add_u32 s%d, s%d, %d' % (sOFFK, sOFFK, STEP))
        elif j < 32:
            for i in range(4):
                g.load('buffer_load_dwordx4 v[%d:%d], v%d, s[%d:%d], s%d offen offset:%d' %
                       (sl + 4 * i, sl + 4 * i + 3, vVOFF, sV, sV + 3, sOFFV, 1024 * i) + FLV, ('u', j))
            e('s_add_u32 s%d, s%d, %d' % (sOFFV, sOFFV, STEP))
        else:
            for i in range(2):
                g.load('buffer_load_dwordx4 v[%d:%d], v%d, s[%d:%d], 0 offen offset:%d' %
                       (sl + 4 * i, sl + 4 * i + 3, vVOFF, sVT, sVT + 3, 1024 * i), ('u', j))

    c('Q loads')
    for u in range(2):
        for s in range(4):
            r = vQ + (u * 4 + s) * 4
            g.load('buffer_load_dwordx4 v[%d:%d], v10, s[%d:%d], %s offen offset:%d' %
                   (r, r + 3, sQ, sQ + 3, ('s%d' % s4096) if u else '0', 64 * s), 'q')
    c('tree K + mask loads')
    slT = free.pop(0)
    for s in range(4):
        g.load('buffer_load_dwordx4 v[%d:%d], v%d, s[%d:%d], 0 offen offset:%d' %
               (slT + 4 * s, slT + 4 * s + 3, kvo(s), sKT, sKT + 3, kio(s)), 'kt')
    g.load('buffer_load_ushort v%d, v11, s[%d:%d], 0 offen' % (vADD0, sMK, sMK + 3), 'mk')
    g.load('buffer_load_ushort v%d, v11, s[%d:%d], 0 offen offset:8' % (vADD1, sMK, sMK + 3), 'mk')
    nxt = 0
    while free:
        issue_unit(nxt); nxt += 1
    def mf(d, a, b, cc, k16=False):
        if k16:
            e('v_mfma_f32_16x16x16_bf16 v[%d:%d], v[%d:%d], v[%d:%d], %s' % (d, d + 3, a, a + 1, b, b + 1, cc))
        else:
            e('v_mfma_f32_16x16x32_bf16 v[%d:%d], v[%d:%d], v[%d:%d], %s' % (d, d + 3, a, a + 3, b, b + 3, cc))
    def acc(d): return 'v[%d:%d]' % (d, d + 3)
    def qk(sl, dst, tmp):
        if KP != 2:
            for u in range(2):
                for s in range(4):
                    mf(dst[u], sl + 4 * s, vQ + (u * 4 + s) * 4, '0' if s == 0 else acc(dst[u]))
            return
        e('s_mov_b64 exec, s[62:63]')
        for h in range(2):
            for k in range(4):
                e('v_swap_b32 v%d, v%d' % (sl + 8 * h + k, sl + 8 * h + 4 + k))
        e('s_mov_b64 exec, -1')
        e('s_nop 1')
        for u in range(2):
            for x in range(2):
                d = dst[u] if x == 0 else tmp[u]
                for h in range(2):
                    s = 2 * h + x
                    mf(d, sl + 4 * s, vQ + (u * 4 + s) * 4, '0' if h == 0 else acc(d))
    def qk_fix(dst, tmp, rs=range(4)):
        if KP != 2: return
        for u in range(2):
            for r in rs:
                e('v_add_f32 v%d, v%d, v%d' % (dst[u] + r, dst[u] + r, tmp[u] + (r ^ 1)))
    c('tree QK')
    stamp()
    g.wait(['q', 'kt', 'mk'])
    stamp()
    vTT = vS + 7 * 16
    qk(slT, [vTT, vTT + 4], [vTT + 8, vTT + 12])
    free.append(slT)
    issue_unit(nxt); nxt += 1
    e('v_lshlrev_b32 v%d, 16, v%d' % (vADD0, vADD0))
    e('v_lshlrev_b32 v%d, 16, v%d' % (vADD1, vADD1))
    e('v_sub_f32 v%d, 1.0, v%d' % (vADD0, vADD0))
    e('v_sub_f32 v%d, 1.0, v%d' % (vADD1, vADD1))
    e('v_mul_f32 v%d, s%d, v%d' % (vADD0, sBIG, vADD0))
    e('v_mul_f32 v%d, s%d, v%d' % (vADD1, sBIG, vADD1))
    e('s_cmp_eq_u32 s%d, 0' % sWAVE)
    e('s_cbranch_scc1 L_w0')
    e('v_mov_b32 v%d, 0xff800000' % vADD0)
    e('v_mov_b32 v%d, 0xff800000' % vADD1)
    g.lab('L_w0')
    e('s_nop 4')
    qk_fix([vTT, vTT + 4], [vTT + 8, vTT + 12], range(2))
    e('v_add_f32 v%d, v%d, v%d' % (vTS + 0, vTT + 0, vADD0))
    e('v_add_f32 v%d, v%d, v%d' % (vTS + 1, vTT + 1, vADD1))
    e('v_add_f32 v%d, v%d, v%d' % (vTS + 2, vTT + 4, vADD0))
    e('v_add_f32 v%d, v%d, v%d' % (vTS + 3, vTT + 5, vADD1))

    c('K phase')
    for t in range(16):
        b, tau = t // 2, t % 2
        g.wait([('u', t)])
        sl = unit_slot[t]
        dst = [vS + b * 16 + u * 8 + tau * 4 for u in range(2)]
        tmp = [vTMP + (t % 2) * 8 + u * 4 for u in range(2)] if KP == 2 else None
        qk(sl, dst, tmp)
        if t > 0: qk_fix(*prev)
        prev = (dst, tmp)
        free.append(sl)
        if t == 15:
            free.append(vQ)
        if BAR and (t % BAR) == BAR - 1: e('s_barrier')
        while free and nxt <= 32:
            issue_unit(nxt); nxt += 1

    stamp()
    c('softmax: max')
    e('s_nop 7')
    qk_fix(*prev)
    if KP == 2:
        free.append(vTMP)
        while free and nxt <= 32:
            issue_unit(nxt); nxt += 1
    for u in range(2):
        vals = [vS + b * 16 + u * 8 + k for b in range(8) for k in range(8)] + [vTS + 2 * u, vTS + 2 * u + 1]
        e('v_max_f32 v%d, v%d, v%d' % (vM[u], vals[0], vals[1]))
        for k in range(2, len(vals), 2):
            e('v_max3_f32 v%d, v%d, v%d, v%d' % (vM[u], vM[u], vals[k], vals[k + 1]))
    def xreduce(regs, op):
        tmps = [vT0, vT1]
        for sw in ('v_permlane16_swap_b32', 'v_permlane32_swap_b32'):
            for r, t in zip(regs, tmps):
                e('v_mov_b32 v%d, v%d' % (t, r))
            e('s_nop 1')
            for r, t in zip(regs, tmps):
                e('%s v%d, v%d' % (sw, r, t))
            e('s_nop 1')
            for r, t in zip(regs, tmps):
                e('%s v%d, v%d, v%d' % (op, r, r, t))
    xreduce(vM, 'v_max_f32')
    c('softmax: exp / sum / pack')
    vMC = [vVT, vVT + 1]
    for u in range(2):
        e('v_mul_f32 v%d, s%d, v%d' % (vMC[u], sC, vM[u]))
        e('v_mov_b32 v%d, 0' % vL[u])
    for u in range(2):
        for k in range(2):
            r = vTS + 2 * u + k
            e('v_fma_f32 v%d, v%d, s%d, -v%d' % (r, r, sC, vMC[u]))
    for r in range(vTS, vTS + 4):
        e('v_exp_f32 v%d, v%d' % (r, r))
    e('s_nop 0')
    for u in range(2):
        e('v_add_f32 v%d, v%d, v%d' % (vVT + 2 + u, vTS + 2 * u, vTS + 2 * u + 1))
    e('v_cvt_pk_bf16_f32 v%d, v%d, v%d' % (vTS, vTS, vTS + 1))
    e('v_mov_b32 v%d, 0' % (vTS + 1))
    e('v_cvt_pk_bf16_f32 v%d, v%d, v%d' % (vTS + 2, vTS + 2, vTS + 3))
    e('v_mov_b32 v%d, 0' % (vTS + 3))
    vL2 = [vVT + 2, vVT + 3]
    for b in range(8):
        for u in range(2):
            base = vS + b * 16 + u * 8
            for k in range(8):
                e('v_fma_f32 v%d, v%d, s%d, -v%d' % (base + k, base + k, sC, vMC[u]))
            for k in range(8):
                e('v_exp_f32 v%d, v%d' % (base + k, base + k))
            for k in range(0, 8, 2):
                e('v_add_f32 v%d, v%d, v%d' % (vL[u], vL[u], base + k))
                e('v_add_f32 v%d, v%d, v%d' % (vL2[u], vL2[u], base + k + 1))
            for k in range(4):
                e('v_cvt_pk_bf16_f32 v%d, v%d, v%d' % (vP + b * 8 + u * 4 + k, base + 2 * k, base + 2 * k + 1))
    for u in range(2):
        e('v_add_f32 v%d, v%d, v%d' % (vL[u], vL[u], vL2[u]))
    xreduce(vL, 'v_add_f32')

    stamp()
    c('V phase')
    for b in range(8):
        g.wait([('u', 16 + 2 * b), ('u', 17 + 2 * b)])
        sa, sb = unit_slot[16 + 2 * b], unit_slot[17 + 2 * b]
        rows = [sa + 4 * i for i in range(4)] + [sb + 4 * i for i in range(4)]
        for cc in range(4):
            tb = vVT + (cc % 2) * 8
            for p in range(4):
                e('v_perm_b32 v%d, v%d, v%d, s%d' % (tb + p, rows[2 * p + 1] + cc, rows[2 * p] + cc, sPLO))
            for p in range(4):
                e('v_perm_b32 v%d, v%d, v%d, s%d' % (tb + 4 + p, rows[2 * p + 1] + cc, rows[2 * p] + cc, sPHI))
            for h in range(2):
                j = 2 * cc + h
                for u in range(2):
                    d = vO + (j * 2 + u) * 4
                    mf(d, tb + 4 * h, vP + b * 8 + u * 4, '0' if b == 0 else acc(d))
        free.append(sa); free.append(sb)
        if BAR and b < 7 and ((2 * b + 1) % BAR) == BAR - 1 or BAR == 1 and b < 7: e('s_barrier')
        while free and nxt <= 32:
            issue_unit(nxt); nxt += 1
    c('tree PV')
    g.wait([('u', 32)])
    sa = unit_slot[32]
    for cc in range(4):
        tb = vVT + (cc % 2) * 8
        e('v_perm_b32 v%d, v%d, v%d, s%d' % (tb, sa + 4 + cc, sa + cc, sPLO))
        e('v_mov_b32 v%d, 0' % (tb + 1))
        e('v_perm_b32 v%d, v%d, v%d, s%d' % (tb + 2, sa + 4 + cc, sa + cc, sPHI))
        e('v_mov_b32 v%d, 0' % (tb + 3))
        e('s_nop 1')
        for h in range(2):
            j = 2 * cc + h
            for u in range(2):
                d = vO + (j * 2 + u) * 4
                mf(d, tb + 2 * h, vTS + 2 * u, acc(d), k16=True)

    stamp()
    c('combine through LDS')
    ROW = 528; WSZ = 32 * ROW; MLB = NW * WSZ
    vA = vRING; vB = vRING + 1; vC = vRING + 2; vD = vRING + 3
    e('v_and_b32 v%d, 63, v0' % vA)
    e('v_and_b32 v%d, 15, v%d' % (vB, vA))
    e('v_lshrrev_b32 v%d, 4, v%d' % (vC, vA))
    e('v_mul_u32_u24 v%d, %d, v%d' % (vD, ROW, vB))
    e('v_lshl_add_u32 v%d, v%d, 7, v%d' % (vD, vC, vD))
    e('s_mul_i32 s%d, s%d, %d' % (sT, sWAVE, WSZ))
    e('v_add_u32 v%d, s%d, v%d' % (vD, sT, vD))
    e('s_lshl_b32 s%d, s%d, 8' % (sT, sWAVE))
    e('s_add_u32 s%d, s%d, %d' % (sT, sT, MLB))
    e('v_lshlrev_b32 v%d, 3, v%d' % (vB, vB))
    e('v_add_u32 v%d, s%d, v%d' % (vB, sT, vB))
    vML = vRING + 4
    for u in range(2):
        e('v_mov_b32 v%d, v%d' % (vML + 2 * u, vM[u]))
        e('v_mov_b32 v%d, v%d' % (vML + 2 * u + 1, vL[u]))
    for u in range(2):
        e('ds_write_b64 v%d, v[%d:%d] offset:%d' % (vB, vML + 2 * u, vML + 2 * u + 1, u * 128))
    e('s_nop 4')
    for u in range(2):
        for j in range(8):
            d = vO + (j * 2 + u) * 4
            e('ds_write_b128 v%d, v[%d:%d] offset:%d' % (vD, d, d + 3, u * 16 * ROW + j * 16))
    e('s_waitcnt lgkmcnt(0)')
    stamp()
    e('s_barrier')
    stamp()
    e('v_lshrrev_b32 v%d, 4, v0' % vA)
    e('v_and_b32 v%d, 15, v0' % vB)
    e('v_mul_u32_u24 v%d, %d, v%d' % (vC, ROW, vA))
    e('v_lshl_add_u32 v%d, v%d, 5, v%d' % (vC, vB, vC))
    e('v_lshlrev_b32 v%d, 3, v%d' % (vD, vA))
    e('v_add_u32 v%d, %d, v%d' % (vD, MLB, vD))
    vR = 16
    for w in range(NW):
        e('ds_read_b64 v[%d:%d], v%d offset:%d' % (vR + 2 * w, vR + 2 * w + 1, vD, w * 256))
    vX = 32
    vC2 = vRING + 8
    e('v_add_u32 v%d, %d, v%d' % (vC2, 4 * WSZ, vC))
    for w in range(NW):
        base = vC if w < 4 else vC2
        off = (w % 4) * WSZ
        e('ds_read_b128 v[%d:%d], v%d offset:%d' % (vX + 8 * w, vX + 8 * w + 3, base, off))
        e('ds_read_b128 v[%d:%d], v%d offset:%d' % (vX + 8 * w + 4, vX + 8 * w + 7, base, off + 16))
    e('s_waitcnt lgkmcnt(15)')
    e('s_waitcnt lgkmcnt(0)')
    vMM = vRING + 9; vLL = vRING + 10; vF = vRING + 16
    e('v_max_f32 v%d, v%d, v%d' % (vMM, vR, vR + 2))
    for w in range(2, NW, 2):
        e('v_max3_f32 v%d, v%d, v%d, v%d' % (vMM, vMM, vR + 2 * w, vR + 2 * w + 2))
    for w in range(NW):
        e('v_sub_f32 v%d, v%d, v%d' % (vF + w, vR + 2 * w, vMM))
    for w in range(NW):
        e('v_mul_f32 v%d, s%d, v%d' % (vF + w, sC, vF + w))
    for w in range(NW):
        e('v_exp_f32 v%d, v%d' % (vF + w, vF + w))
    e('s_nop 0')
    e('v_mul_f32 v%d, v%d, v%d' % (vLL, vF, vR + 1))
    for w in range(1, NW):
        e('v_fma_f32 v%d, v%d, v%d, v%d' % (vLL, vF + w, vR + 2 * w + 1, vLL))
    e('v_rcp_f32 v%d, v%d' % (vLL, vLL))
    e('s_nop 0')
    for w in range(NW):
        e('v_mul_f32 v%d, v%d, v%d' % (vF + w, vF + w, vLL))
    vY = vRING + 32
    for k in range(8):
        e('v_mul_f32 v%d, v%d, v%d' % (vY + k, vF, vX + k))
    for w in range(1, NW):
        for k in range(8):
            e('v_fma_f32 v%d, v%d, v%d, v%d' % (vY + k, vF + w, vX + 8 * w + k, vY + k))
    e('v_lshrrev_b32 v%d, 2, v%d' % (vC, vB))
    e('v_and_b32 v%d, 3, v%d' % (vD, vB))
    e('v_lshlrev_b32 v%d, 8, v%d' % (vA, vA))
    e('v_lshl_add_u32 v%d, v%d, 6, v%d' % (vA, vC, vA))
    e('v_lshl_add_u32 v%d, v%d, 2, v%d' % (vA, vD, vA))
    for r in range(4):
        e('v_cvt_pk_bf16_f32 v%d, v%d, v%d' % (vY + 8 + r, vY + r, vY + 4 + r))
    for r in range(4):
        e('buffer_store_dword v%d, v%d, s[%d:%d], 0 offen offset:%d' % (vY + 8 + r, vA, sOUT, sOUT + 3, 16 * r))
    if STAMP:
        e('s_waitcnt vmcnt(0)')
        stamp()
        e('s_load_dwordx2 s[36:37], s[0:1], 64')
        e('s_lshl_b32 s%d, s2, 3' % sT)
        e('s_add_u32 s%d, s%d, s%d' % (sT, sT, sWAVE))
        e('s_lshl_b32 s%d, s%d, 6' % (sT, sT))
        e('s_waitcnt lgkmcnt(0)')
        e('s_add_u32 s36, s36, s%d' % sT)
        e('s_addc_u32 s37, s37, 0')
        e('s_mov_b32 s38, 64')
        e('s_mov_b32 s39, 0x00020000')
        e('v_mov_b32 v1, 0')
        for k in range(nst[0]):
            e('v_mov_b32 v2, s%d' % (64 + 2 * k))
            e('buffer_store_dword v2, v1, s[36:39], 0 offen offset:%d' % (4 * k))
            e('s_nop 1')
    g.lab('L_end')
    e('s_endpgm')
    lds = MLB + NW * 256
    out = HDR + '; @launch grid=(256,1,1) block=(512,1,1) lds=%d\n' % lds
    out += '.amdgcn_target "amdgcn-amd-amdhsa--gfx950"\n.text\n.globl %s_kernel\n.p2align 8\n.type %s_kernel,@function\n%s_kernel:\n' % (NAME, NAME, NAME)
    out += '\n'.join(g.l) + '\n'
    out += '''.section .rodata,"a"
.p2align 6
.amdhsa_kernel %s_kernel
  .amdhsa_next_free_vgpr 256
  .amdhsa_next_free_sgpr 96
  .amdhsa_accum_offset 256
  .amdhsa_group_segment_fixed_size 0
  .amdhsa_kernarg_size 72
  .amdhsa_user_sgpr_count 2
  .amdhsa_user_sgpr_kernarg_segment_ptr 1
  .amdhsa_system_sgpr_workgroup_id_x 1
.end_amdhsa_kernel
''' % NAME
    return out

if __name__ == '__main__':
    path = sys.argv[1] if len(sys.argv) > 1 else 'cdna_kernels/%s.s' % NAME
    opts = dict(a.split('=') for a in sys.argv[2:])
    opts = {k: v.replace('+', ' ') for k, v in opts.items()}
    open(path, 'w').write(gen(opts))
```

```python
import sys, struct, math
NAME = "standalone__tree_speculative_verify_tree_attention_over_candidate_token_tree__sampling"
HDR = open('cdna_kernels/%s.s.ref' % NAME).read().split('; @launch')[0]

def f32(x):
    return struct.unpack('<I', struct.pack('<f', x))[0]

class G:
    def __init__(s):
        s.l = []
        s.vm = []
    def e(s, t): s.l.append('    ' + t)
    def c(s, t): s.l.append('    ; ' + t)
    def lab(s, t): s.l.append(t + ':')
    def load(s, t, tag):
        s.e(t); s.vm.append(tag)
    def wait(s, tags):
        idx = [i for i, t in enumerate(s.vm) if t in tags]
        if not idx: return
        last = max(idx)
        n = len(s.vm) - 1 - last
        s.e('s_waitcnt vmcnt(%d)' % n)
        s.vm = s.vm[last + 1:]

def gen(opts):
    NW = 8
    BAR = int(opts.get('bar', 0))
    FLK = ' ' + opts.get('fk', 'nt')
    FLV = ' ' + opts.get('fv', 'nt')
    g = G()
    e, c = g.e, g.c
    vTID = 0; vKOFF = 1; vVOFF = 2; vADD0 = 3; vADD1 = 4
    vTS = 6
    vM = [10, 11]; vL = [12, 13]; vT0 = 14; vT1 = 15
    vQ = 16
    vS = 48
    vRING = 176
    KP = int(opts.get('kp', 2))
    vKOFF1 = 5
    if KP == 2:
        slots = [vRING + 16 * i for i in range(4)]
        vTMP = vRING + 64
    else:
        slots = [vRING + 16 * i for i in range(5)]
    vVT = 32
    vP = vS
    vO = vS + 64
    sWAVE = 3
    sQ, sK, sV, sKT, sVT, sMK, sOUT = 8, 12, 16, 20, 24, 28, 32
    sPTR = 36
    sC = 52; sPLO = 53; sPHI = 54; s4096 = 55; sOFFK = 56; sOFFV = 57; sT = 58; sT2 = 59; sBIG = 60
    SCALE = 128 ** -0.5
    CEXP = SCALE * math.log2(math.e)
    BIG = -1e9 / SCALE

    STAMP = int(opts.get('stamp', 0))
    nst = [0]
    def stamp():
        if not STAMP: return
        e('s_memrealtime s[%d:%d]' % (64 + 2 * nst[0], 65 + 2 * nst[0]))
        e('s_waitcnt lgkmcnt(0)')
        nst[0] += 1
    e('s_cmp_ge_u32 s2, 256')
    e('s_cbranch_scc1 L_end')
    stamp()
    if opts.get('dbg'): e('s_memrealtime s[64:65]')
    e('s_load_dwordx16 s[%d:%d], s[0:1], 0' % (sPTR, sPTR + 15))
    e('v_lshrrev_b32 v%d, 6, v0' % vT0)
    e('v_and_b32 v%d, 63, v0' % vT1)
    e('v_readfirstlane_b32 s%d, v%d' % (sWAVE, vT0))
    e('v_lshlrev_b32 v%d, 4, v%d' % (vVOFF, vT1))
    e('v_and_b32 v20, 3, v%d' % vT1)
    e('v_lshlrev_b32 v20, 10, v20')
    e('v_bfe_u32 v21, v%d, 2, 2' % vT1)
    e('v_lshlrev_b32 v21, 8, v21')
    e('v_lshrrev_b32 v22, 4, v%d' % vT1)
    e('v_lshlrev_b32 v23, 4, v22')
    e('v_add3_u32 v%d, v20, v21, v23' % vKOFF)
    if KP == 2:
        for ll, dst in ((0, vKOFF), (1, vKOFF1)):
            e('v_and_b32 v20, 14, v%d' % vT1); e('v_or_b32 v20, %d, v20' % ll)
            e('v_and_b32 v21, 3, v20'); e('v_lshlrev_b32 v21, 10, v21'); e('v_bfe_u32 v20, v20, 2, 2'); e('v_lshl_add_u32 v21, v20, 8, v21')
            e('v_and_b32 v20, 1, v%d' % vT1); e('v_xor_b32 v20, %d, v20' % ll); e('v_lshl_add_u32 v21, v20, 6, v21')
            e('v_add_u32 v%d, v21, v23' % dst)
        e('s_mov_b32 s62, 0xaaaaaaaa'); e('s_mov_b32 s63, 0xaaaaaaaa')
    e('v_and_b32 v20, 15, v%d' % vT1)
    e('v_lshl_add_u32 v10, v20, 8, v23')
    e('v_and_b32 v20, 7, v%d' % vT1)
    e('v_lshlrev_b32 v21, 1, v22')
    e('v_lshl_add_u32 v11, v20, 4, v21')
    e('s_mov_b32 s%d, 0x%08x' % (sC, f32(CEXP)))
    e('s_mov_b32 s%d, 0x05040100' % sPLO)
    e('s_mov_b32 s%d, 0x07060302' % sPHI)
    e('s_mov_b32 s%d, 4096' % s4096)
    e('s_mov_b32 s%d, 0x%08x' % (sBIG, f32(BIG)))
    e('s_waitcnt lgkmcnt(0)')
    def srd(d, p, off_sgpr, nrec):
        e('s_add_u32 s%d, s%d, s%d' % (d, sPTR + 2 * p, off_sgpr))
        e('s_addc_u32 s%d, s%d, 0' % (d + 1, sPTR + 2 * p + 1))
        e('s_mov_b32 s%d, %d' % (d + 2, nrec))
        e('s_mov_b32 s%d, 0x00020000' % (d + 3))
    e('s_lshl_b32 s%d, s2, 19' % sT)
    INTER = int(opts.get('inter', 1))
    STEP = 32768 if INTER else 4096
    e('s_lshl_b32 s%d, s%d, %d' % (sT2, sWAVE, 12 if INTER else 16))
    e('s_add_u32 s%d, s%d, s%d' % (sT, sT, sT2))
    srd(sK, 1, sT, (524288 - 28672) if INTER else 65536)
    srd(sV, 2, sT, (524288 - 28672) if INTER else 65536)
    e('s_lshl_b32 s%d, s2, 13' % sT)
    srd(sQ, 0, sT, 8192)
    srd(sOUT, 6, sT, 8192)
    e('s_lshl_b32 s%d, s2, 11' % sT)
    srd(sKT, 3, sT, 2048)
    srd(sVT, 4, sT, 2048)
    e('s_lshr_b32 s%d, s2, 3' % sT)
    e('s_lshl_b32 s%d, s%d, 7' % (sT, sT))
    srd(sMK, 5, sT, 128)
    e('s_mov_b32 s%d, 0' % sOFFK)
    e('s_mov_b32 s%d, 0' % sOFFV)

    def kvo(s): return (vKOFF1 if (s & 1) else vKOFF) if KP == 2 else vKOFF
    def kio(s): return 128 * (s >> 1) if KP == 2 else 64 * s
    free = list(slots)
    unit_slot = {}
    def issue_unit(j):
        sl = free.pop(0)
        unit_slot[j] = sl
        if j < 16:
            for s in range(4):
                g.load('buffer_load_dwordx4 v[%d:%d], v%d, s[%d:%d], s%d offen offset:%d' %
                       (sl + 4 * s, sl + 4 * s + 3, kvo(s), sK, sK + 3, sOFFK, kio(s)) + FLK, ('u', j))
            e('s_add_u32 s%d, s%d, %d' % (sOFFK, sOFFK, STEP))
        elif j < 32:
            for i in range(4):
                g.load('buffer_load_dwordx4 v[%d:%d], v%d, s[%d:%d], s%d offen offset:%d' %
                       (sl + 4 * i, sl + 4 * i + 3, vVOFF, sV, sV + 3, sOFFV, 1024 * i) + FLV, ('u', j))
            e('s_add_u32 s%d, s%d, %d' % (sOFFV, sOFFV, STEP))
        else:
            for i in range(2):
                g.load('buffer_load_dwordx4 v[%d:%d], v%d, s[%d:%d], 0 offen offset:%d' %
                       (sl + 4 * i, sl + 4 * i + 3, vVOFF, sVT, sVT + 3, 1024 * i), ('u', j))

    c('Q loads')
    for u in range(2):
        for s in range(4):
            r = vQ + (u * 4 + s) * 4
            g.load('buffer_load_dwordx4 v[%d:%d], v10, s[%d:%d], %s offen offset:%d' %
                   (r, r + 3, sQ, sQ + 3, ('s%d' % s4096) if u else '0', 64 * s), 'q')
    c('tree K + mask loads')
    slT = free.pop(0)
    for s in range(4):
        g.load('buffer_load_dwordx4 v[%d:%d], v%d, s[%d:%d], 0 offen offset:%d' %
               (slT + 4 * s, slT + 4 * s + 3, kvo(s), sKT, sKT + 3, kio(s)), 'kt')
    g.load('buffer_load_ushort v%d, v11, s[%d:%d], 0 offen' % (vADD0, sMK, sMK + 3), 'mk')
    g.load('buffer_load_ushort v%d, v11, s[%d:%d], 0 offen offset:8' % (vADD1, sMK, sMK + 3), 'mk')
    nxt = 0
    while free:
        issue_unit(nxt); nxt += 1
    def mf(d, a, b, cc, k16=False):
        if k16:
            e('v_mfma_f32_16x16x16_bf16 v[%d:%d], v[%d:%d], v[%d:%d], %s' % (d, d + 3, a, a + 1, b, b + 1, cc))
        else:
            e('v_mfma_f32_16x16x32_bf16 v[%d:%d], v[%d:%d], v[%d:%d], %s' % (d, d + 3, a, a + 3, b, b + 3, cc))
    def acc(d): return 'v[%d:%d]' % (d, d + 3)
    def qk(sl, dst, tmp):
        if KP != 2:
            for u in range(2):
                for s in range(4):
                    mf(dst[u], sl + 4 * s, vQ + (u * 4 + s) * 4, '0' if s == 0 else acc(dst[u]))
            return
        e('s_mov_b64 exec, s[62:63]')
        for h in range(2):
            for k in range(4):
                e('v_swap_b32 v%d, v%d' % (sl + 8 * h + k, sl + 8 * h + 4 + k))
        e('s_mov_b64 exec, -1')
        e('s_nop 1')
        for u in range(2):
            for x in range(2):
                d = dst[u] if x == 0 else tmp[u]
                for h in range(2):
                    s = 2 * h + x
                    mf(d, sl + 4 * s, vQ + (u * 4 + s) * 4, '0' if h == 0 else acc(d))
    def qk_fix(dst, tmp, rs=range(4)):
        if KP != 2: return
        for u in range(2):
            for r in rs:
                e('v_add_f32 v%d, v%d, v%d' % (dst[u] + r, dst[u] + r, tmp[u] + (r ^ 1)))
    c('tree QK')
    stamp()
    g.wait(['q', 'kt', 'mk'])
    stamp()
    vTT = vS + 7 * 16
    qk(slT, [vTT, vTT + 4], [vTT + 8, vTT + 12])
    free.append(slT)
    issue_unit(nxt); nxt += 1
    e('v_lshlrev_b32 v%d, 16, v%d' % (vADD0, vADD0))
    e('v_lshlrev_b32 v%d, 16, v%d' % (vADD1, vADD1))
    e('v_sub_f32 v%d, 1.0, v%d' % (vADD0, vADD0))
    e('v_sub_f32 v%d, 1.0, v%d' % (vADD1, vADD1))
    e('v_mul_f32 v%d, s%d, v%d' % (vADD0, sBIG, vADD0))
    e('v_mul_f32 v%d, s%d, v%d' % (vADD1, sBIG, vADD1))
    e('s_cmp_eq_u32 s%d, 0' % sWAVE)
    e('s_cbranch_scc1 L_w0')
    e('v_mov_b32 v%d, 0xff800000' % vADD0)
    e('v_mov_b32 v%d, 0xff800000' % vADD1)
    g.lab('L_w0')
    e('s_nop 4')
    qk_fix([vTT, vTT + 4], [vTT + 8, vTT + 12], range(2))
    e('v_add_f32 v%d, v%d, v%d' % (vTS + 0, vTT + 0, vADD0))
    e('v_add_f32 v%d, v%d, v%d' % (vTS + 1, vTT + 1, vADD1))
    e('v_add_f32 v%d, v%d, v%d' % (vTS + 2, vTT + 4, vADD0))
    e('v_add_f32 v%d, v%d, v%d' % (vTS + 3, vTT + 5, vADD1))

    c('K phase')
    for t in range(16):
        b, tau = t // 2, t % 2
        g.wait([('u', t)])
        sl = unit_slot[t]
        dst = [vS + b * 16 + u * 8 + tau * 4 for u in range(2)]
        tmp = [vTMP + (t % 2) * 8 + u * 4 for u in range(2)] if KP == 2 else None
        qk(sl, dst, tmp)
        if t > 0: qk_fix(*prev)
        prev = (dst, tmp)
        free.append(sl)
        if t == 15:
            free.append(vQ)
        if BAR and (t % BAR) == BAR - 1: e('s_barrier')
        while free and nxt <= 32:
            issue_unit(nxt); nxt += 1

    stamp()
    c('softmax: max')
    e('s_nop 7')
    qk_fix(*prev)
    if KP == 2:
        free.append(vTMP)
        while free and nxt <= 32:
            issue_unit(nxt); nxt += 1
    for u in range(2):
        vals = [vS + b * 16 + u * 8 + k for b in range(8) for k in range(8)] + [vTS + 2 * u, vTS + 2 * u + 1]
        e('v_max_f32 v%d, v%d, v%d' % (vM[u], vals[0], vals[1]))
        for k in range(2, len(vals), 2):
            e('v_max3_f32 v%d, v%d, v%d, v%d' % (vM[u], vM[u], vals[k], vals[k + 1]))
    def xreduce(regs, op):
        tmps = [vT0, vT1]
        for sw in ('v_permlane16_swap_b32', 'v_permlane32_swap_b32'):
            for r, t in zip(regs, tmps):
                e('v_mov_b32 v%d, v%d' % (t, r))
            e('s_nop 1')
            for r, t in zip(regs, tmps):
                e('%s v%d, v%d' % (sw, r, t))
            e('s_nop 1')
            for r, t in zip(regs, tmps):
                e('%s v%d, v%d, v%d' % (op, r, r, t))
    xreduce(vM, 'v_max_f32')
    c('softmax: exp / sum / pack')
    vMC = [vVT, vVT + 1]
    for u in range(2):
        e('v_mul_f32 v%d, s%d, v%d' % (vMC[u], sC, vM[u]))
        e('v_mov_b32 v%d, 0' % vL[u])
    for u in range(2):
        for k in range(2):
            r = vTS + 2 * u + k
            e('v_fma_f32 v%d, v%d, s%d, -v%d' % (r, r, sC, vMC[u]))
    for r in range(vTS, vTS + 4):
        e('v_exp_f32 v%d, v%d' % (r, r))
    e('s_nop 0')
    for u in range(2):
        e('v_add_f32 v%d, v%d, v%d' % (vVT + 2 + u, vTS + 2 * u, vTS + 2 * u + 1))
    e('v_cvt_pk_bf16_f32 v%d, v%d, v%d' % (vTS, vTS, vTS + 1))
    e('v_mov_b32 v%d, 0' % (vTS + 1))
    e('v_cvt_pk_bf16_f32 v%d, v%d, v%d' % (vTS + 2, vTS + 2, vTS + 3))
    e('v_mov_b32 v%d, 0' % (vTS + 3))
    vL2 = [vVT + 2, vVT + 3]
    for b in range(8):
        for u in range(2):
            base = vS + b * 16 + u * 8
            for k in range(8):
                e('v_fma_f32 v%d, v%d, s%d, -v%d' % (base + k, base + k, sC, vMC[u]))
            for k in range(8):
                e('v_exp_f32 v%d, v%d' % (base + k, base + k))
            for k in range(0, 8, 2):
                e('v_add_f32 v%d, v%d, v%d' % (vL[u], vL[u], base + k))
                e('v_add_f32 v%d, v%d, v%d' % (vL2[u], vL2[u], base + k + 1))
            for k in range(4):
                e('v_cvt_pk_bf16_f32 v%d, v%d, v%d' % (vP + b * 8 + u * 4 + k, base + 2 * k, base + 2 * k + 1))
    for u in range(2):
        e('v_add_f32 v%d, v%d, v%d' % (vL[u], vL[u], vL2[u]))
    xreduce(vL, 'v_add_f32')

    stamp()
    c('V phase')
    for b in range(8):
        g.wait([('u', 16 + 2 * b), ('u', 17 + 2 * b)])
        sa, sb = unit_slot[16 + 2 * b], unit_slot[17 + 2 * b]
        rows = [sa + 4 * i for i in range(4)] + [sb + 4 * i for i in range(4)]
        for cc in range(4):
            tb = vVT + (cc % 2) * 8
            for p in range(4):
                e('v_perm_b32 v%d, v%d, v%d, s%d' % (tb + p, rows[2 * p + 1] + cc, rows[2 * p] + cc, sPLO))
            for p in range(4):
                e('v_perm_b32 v%d, v%d, v%d, s%d' % (tb + 4 + p, rows[2 * p + 1] + cc, rows[2 * p] + cc, sPHI))
            for h in range(2):
                j = 2 * cc + h
                for u in range(2):
                    d = vO + (j * 2 + u) * 4
                    mf(d, tb + 4 * h, vP + b * 8 + u * 4, '0' if b == 0 else acc(d))
        free.append(sa); free.append(sb)
        if BAR and b < 7 and ((2 * b + 1) % BAR) == BAR - 1 or BAR == 1 and b < 7: e('s_barrier')
        while free and nxt <= 32:
            issue_unit(nxt); nxt += 1
    c('tree PV')
    g.wait([('u', 32)])
    sa = unit_slot[32]
    for cc in range(4):
        tb = vVT + (cc % 2) * 8
        e('v_perm_b32 v%d, v%d, v%d, s%d' % (tb, sa + 4 + cc, sa + cc, sPLO))
        e('v_mov_b32 v%d, 0' % (tb + 1))
        e('v_perm_b32 v%d, v%d, v%d, s%d' % (tb + 2, sa + 4 + cc, sa + cc, sPHI))
        e('v_mov_b32 v%d, 0' % (tb + 3))
        e('s_nop 1')
        for h in range(2):
            j = 2 * cc + h
            for u in range(2):
                d = vO + (j * 2 + u) * 4
                mf(d, tb + 2 * h, vTS + 2 * u, acc(d), k16=True)

    stamp()
    c('combine through LDS')
    ROW = 528; WSZ = 32 * ROW; MLB = NW * WSZ
    vA = vRING; vB = vRING + 1; vC = vRING + 2; vD = vRING + 3
    e('v_and_b32 v%d, 63, v0' % vA)
    e('v_and_b32 v%d, 15, v%d' % (vB, vA))
    e('v_lshrrev_b32 v%d, 4, v%d' % (vC, vA))
    e('v_mul_u32_u24 v%d, %d, v%d' % (vD, ROW, vB))
    e('v_lshl_add_u32 v%d, v%d, 7, v%d' % (vD, vC, vD))
    e('s_mul_i32 s%d, s%d, %d' % (sT, sWAVE, WSZ))
    e('v_add_u32 v%d, s%d, v%d' % (vD, sT, vD))
    e('s_lshl_b32 s%d, s%d, 8' % (sT, sWAVE))
    e('s_add_u32 s%d, s%d, %d' % (sT, sT, MLB))
    e('v_lshlrev_b32 v%d, 3, v%d' % (vB, vB))
    e('v_add_u32 v%d, s%d, v%d' % (vB, sT, vB))
    vML = vRING + 4
    for u in range(2):
        e('v_mov_b32 v%d, v%d' % (vML + 2 * u, vM[u]))
        e('v_mov_b32 v%d, v%d' % (vML + 2 * u + 1, vL[u]))
    for u in range(2):
        e('ds_write_b64 v%d, v[%d:%d] offset:%d' % (vB, vML + 2 * u, vML + 2 * u + 1, u * 128))
    e('s_nop 4')
    for u in range(2):
        for j in range(8):
            d = vO + (j * 2 + u) * 4
            e('ds_write_b128 v%d, v[%d:%d] offset:%d' % (vD, d, d + 3, u * 16 * ROW + j * 16))
    e('s_waitcnt lgkmcnt(0)')
    stamp()
    e('s_barrier')
    stamp()
    e('v_lshrrev_b32 v%d, 4, v0' % vA)
    e('v_and_b32 v%d, 15, v0' % vB)
    e('v_mul_u32_u24 v%d, %d, v%d' % (vC, ROW, vA))
    e('v_lshl_add_u32 v%d, v%d, 5, v%d' % (vC, vB, vC))
    e('v_lshlrev_b32 v%d, 3, v%d' % (vD, vA))
    e('v_add_u32 v%d, %d, v%d' % (vD, MLB, vD))
    vR = 16
    for w in range(NW):
        e('ds_read_b64 v[%d:%d], v%d offset:%d' % (vR + 2 * w, vR + 2 * w + 1, vD, w * 256))
    vX = 32
    vC2 = vRING + 8
    e('v_add_u32 v%d, %d, v%d' % (vC2, 4 * WSZ, vC))
    for w in range(NW):
        base = vC if w < 4 else vC2
        off = (w % 4) * WSZ
        e('ds_read_b128 v[%d:%d], v%d offset:%d' % (vX + 8 * w, vX + 8 * w + 3, base, off))
        e('ds_read_b128 v[%d:%d], v%d offset:%d' % (vX + 8 * w + 4, vX + 8 * w + 7, base, off + 16))
    e('s_waitcnt lgkmcnt(15)')
    e('s_waitcnt lgkmcnt(0)')
    vMM = vRING + 9; vLL = vRING + 10; vF = vRING + 16
    e('v_max_f32 v%d, v%d, v%d' % (vMM, vR, vR + 2))
    for w in range(2, NW, 2):
        e('v_max3_f32 v%d, v%d, v%d, v%d' % (vMM, vMM, vR + 2 * w, vR + 2 * w + 2))
    for w in range(NW):
        e('v_sub_f32 v%d, v%d, v%d' % (vF + w, vR + 2 * w, vMM))
    for w in range(NW):
        e('v_mul_f32 v%d, s%d, v%d' % (vF + w, sC, vF + w))
    for w in range(NW):
        e('v_exp_f32 v%d, v%d' % (vF + w, vF + w))
    e('s_nop 0')
    e('v_mul_f32 v%d, v%d, v%d' % (vLL, vF, vR + 1))
    for w in range(1, NW):
        e('v_fma_f32 v%d, v%d, v%d, v%d' % (vLL, vF + w, vR + 2 * w + 1, vLL))
    e('v_rcp_f32 v%d, v%d' % (vLL, vLL))
    e('s_nop 0')
    for w in range(NW):
        e('v_mul_f32 v%d, v%d, v%d' % (vF + w, vF + w, vLL))
    vY = vRING + 32
    for k in range(8):
        e('v_mul_f32 v%d, v%d, v%d' % (vY + k, vF, vX + k))
    for w in range(1, NW):
        for k in range(8):
            e('v_fma_f32 v%d, v%d, v%d, v%d' % (vY + k, vF + w, vX + 8 * w + k, vY + k))
    e('v_lshrrev_b32 v%d, 2, v%d' % (vC, vB))
    e('v_and_b32 v%d, 3, v%d' % (vD, vB))
    e('v_lshlrev_b32 v%d, 8, v%d' % (vA, vA))
    e('v_lshl_add_u32 v%d, v%d, 6, v%d' % (vA, vC, vA))
    e('v_lshl_add_u32 v%d, v%d, 2, v%d' % (vA, vD, vA))
    for r in range(4):
        e('v_cvt_pk_bf16_f32 v%d, v%d, v%d' % (vY + 8 + r, vY + r, vY + 4 + r))
    for r in range(4):
        e('buffer_store_dword v%d, v%d, s[%d:%d], 0 offen offset:%d' % (vY + 8 + r, vA, sOUT, sOUT + 3, 16 * r))
    if STAMP:
        e('s_waitcnt vmcnt(0)')
        stamp()
        e('s_load_dwordx2 s[36:37], s[0:1], 64')
        e('s_lshl_b32 s%d, s2, 3' % sT)
        e('s_add_u32 s%d, s%d, s%d' % (sT, sT, sWAVE))
        e('s_lshl_b32 s%d, s%d, 6' % (sT, sT))
        e('s_waitcnt lgkmcnt(0)')
        e('s_add_u32 s36, s36, s%d' % sT)
        e('s_addc_u32 s37, s37, 0')
        e('s_mov_b32 s38, 64')
        e('s_mov_b32 s39, 0x00020000')
        e('v_mov_b32 v1, 0')
        for k in range(nst[0]):
            e('v_mov_b32 v2, s%d' % (64 + 2 * k))
            e('buffer_store_dword v2, v1, s[36:39], 0 offen offset:%d' % (4 * k))
            e('s_nop 1')
    if opts.get('dbg'):
        e('s_waitcnt vmcnt(0)')
        e('s_memrealtime s[66:67]')
        e('s_waitcnt lgkmcnt(0)')
        e('s_mov_b32 s36, s50'); e('s_mov_b32 s37, s51'); e('s_mov_b32 s38, 256'); e('s_mov_b32 s39, 0x00020000')
        e('s_sub_u32 s68, s66, s64')
        e('s_sub_u32 s69, -1, s64')
        e('v_mov_b32 v1, 0')
        e('v_cmp_eq_u32 vcc, 0, v%d' % vVOFF)
        e('s_and_saveexec_b64 s[70:71], vcc')
        e('v_mov_b32 v2, s68'); e('v_mov_b32 v3, s66'); e('v_mov_b32 v4, s69')
        e('buffer_atomic_umax v2, v1, s[36:39], 0 offen')
        e('buffer_atomic_add v2, v1, s[36:39], 0 offen offset:4')
        e('buffer_atomic_umax v3, v1, s[36:39], 0 offen offset:8')
        e('buffer_atomic_umax v4, v1, s[36:39], 0 offen offset:12')
    g.lab('L_end')
    e('s_endpgm')
    lds = MLB + NW * 256
    out = HDR + '; @launch grid=(256,1,1) block=(512,1,1) lds=%d\n' % lds
    out += '.amdgcn_target "amdgcn-amd-amdhsa--gfx950"\n.text\n.globl %s_kernel\n.p2align 8\n.type %s_kernel,@function\n%s_kernel:\n' % (NAME, NAME, NAME)
    out += '\n'.join(g.l) + '\n'
    out += '''.section .rodata,"a"
.p2align 6
.amdhsa_kernel %s_kernel
  .amdhsa_next_free_vgpr 256
  .amdhsa_next_free_sgpr 96
  .amdhsa_accum_offset 256
  .amdhsa_group_segment_fixed_size 0
  .amdhsa_kernarg_size 72
  .amdhsa_user_sgpr_count 2
  .amdhsa_user_sgpr_kernarg_segment_ptr 1
  .amdhsa_system_sgpr_workgroup_id_x 1
.end_amdhsa_kernel
''' % NAME
    return out

if __name__ == '__main__':
    path = sys.argv[1] if len(sys.argv) > 1 else 'cdna_kernels/%s.s' % NAME
    opts = dict(a.split('=') for a in sys.argv[2:])
    opts = {k: v.replace('+', ' ') for k, v in opts.items()}
    open(path, 'w').write(gen(opts))
```

```python
import sys, struct, math
NAME = "standalone__tree_speculative_verify_tree_attention_over_candidate_token_tree__sampling"
HDR = open('cdna_kernels/%s.s.ref' % NAME).read().split('; @launch')[0]

def f32(x):
    return struct.unpack('<I', struct.pack('<f', x))[0]

class G:
    def __init__(s):
        s.l = []
        s.vm = []
    def e(s, t): s.l.append('    ' + t)
    def c(s, t): s.l.append('    ; ' + t)
    def lab(s, t): s.l.append(t + ':')
    def load(s, t, tag):
        s.e(t); s.vm.append(tag)
    def wait(s, tags):
        idx = [i for i, t in enumerate(s.vm) if t in tags]
        if not idx: return
        last = max(idx)
        n = len(s.vm) - 1 - last
        s.e('s_waitcnt vmcnt(%d)' % n)
        s.vm = s.vm[last + 1:]

def gen(opts):
    NW = 8
    BAR = int(opts.get('bar', 0))
    FLK = ' ' + opts.get('fk', 'nt')
    FLV = ' ' + opts.get('fv', 'nt')
    g = G()
    e, c = g.e, g.c
    vTID = 0; vKOFF = 1; vVOFF = 2; vADD0 = 3; vADD1 = 4
    vTS = 6
    vM = [10, 11]; vL = [12, 13]; vT0 = 14; vT1 = 15
    vQ = 16
    vS = 48
    vRING = 176
    KP = int(opts.get('kp', 2))
    vKOFF1 = 5
    if KP == 2:
        slots = [vRING + 16 * i for i in range(4)]
        vTMP = vRING + 64
    else:
        slots = [vRING + 16 * i for i in range(5)]
    vVT = 32
    vP = vS
    vO = vS + 64
    sWAVE = 3
    sQ, sK, sV, sKT, sVT, sMK, sOUT = 8, 12, 16, 20, 24, 28, 32
    sPTR = 36
    sC = 52; sPLO = 53; sPHI = 54; s4096 = 55; sOFFK = 56; sOFFV = 57; sT = 58; sT2 = 59; sBIG = 60
    SCALE = 128 ** -0.5
    CEXP = SCALE * math.log2(math.e)
    BIG = -1e9 / SCALE

    STAMP = int(opts.get('stamp', 0))
    nst = [0]
    def stamp():
        if not STAMP: return
        e('s_memrealtime s[%d:%d]' % (64 + 2 * nst[0], 65 + 2 * nst[0]))
        e('s_waitcnt lgkmcnt(0)')
        nst[0] += 1
    e('s_cmp_ge_u32 s2, 256')
    e('s_cbranch_scc1 L_end')
    stamp()
    e('s_load_dwordx16 s[%d:%d], s[0:1], 0' % (sPTR, sPTR + 15))
    e('v_lshrrev_b32 v%d, 6, v0' % vT0)
    e('v_and_b32 v%d, 63, v0' % vT1)
    e('v_readfirstlane_b32 s%d, v%d' % (sWAVE, vT0))
    e('v_lshlrev_b32 v%d, 4, v%d' % (vVOFF, vT1))
    e('v_and_b32 v20, 3, v%d' % vT1)
    e('v_lshlrev_b32 v20, 10, v20')
    e('v_bfe_u32 v21, v%d, 2, 2' % vT1)
    e('v_lshlrev_b32 v21, 8, v21')
    e('v_lshrrev_b32 v22, 4, v%d' % vT1)
    e('v_lshlrev_b32 v23, 4, v22')
    e('v_add3_u32 v%d, v20, v21, v23' % vKOFF)
    if KP == 2:
        for ll, dst in ((0, vKOFF), (1, vKOFF1)):
            e('v_and_b32 v20, 14, v%d' % vT1); e('v_or_b32 v20, %d, v20' % ll)
            e('v_and_b32 v21, 3, v20'); e('v_lshlrev_b32 v21, 10, v21'); e('v_bfe_u32 v20, v20, 2, 2'); e('v_lshl_add_u32 v21, v20, 8, v21')
            e('v_and_b32 v20, 1, v%d' % vT1); e('v_xor_b32 v20, %d, v20' % ll); e('v_lshl_add_u32 v21, v20, 6, v21')
            e('v_add_u32 v%d, v21, v23' % dst)
        e('s_mov_b32 s62, 0xaaaaaaaa'); e('s_mov_b32 s63, 0xaaaaaaaa')
    e('v_and_b32 v20, 15, v%d' % vT1)
    e('v_lshl_add_u32 v10, v20, 8, v23')
    e('v_and_b32 v20, 7, v%d' % vT1)
    e('v_lshlrev_b32 v21, 1, v22')
    e('v_lshl_add_u32 v11, v20, 4, v21')
    e('s_mov_b32 s%d, 0x%08x' % (sC, f32(CEXP)))
    e('s_mov_b32 s%d, 0x05040100' % sPLO)
    e('s_mov_b32 s%d, 0x07060302' % sPHI)
    e('s_mov_b32 s%d, 4096' % s4096)
    e('s_mov_b32 s%d, 0x%08x' % (sBIG, f32(BIG)))
    e('s_waitcnt lgkmcnt(0)')
    def srd(d, p, off_sgpr, nrec):
        e('s_add_u32 s%d, s%d, s%d' % (d, sPTR + 2 * p, off_sgpr))
        e('s_addc_u32 s%d, s%d, 0' % (d + 1, sPTR + 2 * p + 1))
        e('s_mov_b32 s%d, %d' % (d + 2, nrec))
        e('s_mov_b32 s%d, 0x00020000' % (d + 3))
    e('s_lshl_b32 s%d, s2, 19' % sT)
    INTER = int(opts.get('inter', 1))
    STEP = 32768 if INTER else 4096
    e('s_lshl_b32 s%d, s%d, %d' % (sT2, sWAVE, 12 if INTER else 16))
    e('s_add_u32 s%d, s%d, s%d' % (sT, sT, sT2))
    srd(sK, 1, sT, (524288 - 28672) if INTER else 65536)
    srd(sV, 2, sT, (524288 - 28672) if INTER else 65536)
    e('s_lshl_b32 s%d, s2, 13' % sT)
    srd(sQ, 0, sT, 8192)
    srd(sOUT, 6, sT, 8192)
    e('s_lshl_b32 s%d, s2, 11' % sT)
    srd(sKT, 3, sT, 2048)
    srd(sVT, 4, sT, 2048)
    e('s_lshr_b32 s%d, s2, 3' % sT)
    e('s_lshl_b32 s%d, s%d, 7' % (sT, sT))
    srd(sMK, 5, sT, 128)
    e('s_mov_b32 s%d, 0' % sOFFK)
    e('s_mov_b32 s%d, 0' % sOFFV)

    def kvo(s): return (vKOFF1 if (s & 1) else vKOFF) if KP == 2 else vKOFF
    def kio(s): return 128 * (s >> 1) if KP == 2 else 64 * s
    free = list(slots)
    unit_slot = {}
    def issue_unit(j):
        sl = free.pop(0)
        unit_slot[j] = sl
        if j < 16:
            for s in range(4):
                g.load('buffer_load_dwordx4 v[%d:%d], v%d, s[%d:%d], s%d offen offset:%d' %
                       (sl + 4 * s, sl + 4 * s + 3, kvo(s), sK, sK + 3, sOFFK, kio(s)) + FLK, ('u', j))
            e('s_add_u32 s%d, s%d, %d' % (sOFFK, sOFFK, STEP))
        elif j < 32:
            for i in range(4):
                g.load('buffer_load_dwordx4 v[%d:%d], v%d, s[%d:%d], s%d offen offset:%d' %
                       (sl + 4 * i, sl + 4 * i + 3, vVOFF, sV, sV + 3, sOFFV, 1024 * i) + FLV, ('u', j))
            e('s_add_u32 s%d, s%d, %d' % (sOFFV, sOFFV, STEP))
        else:
            for i in range(2):
                g.load('buffer_load_dwordx4 v[%d:%d], v%d, s[%d:%d], 0 offen offset:%d' %
                       (sl + 4 * i, sl + 4 * i + 3, vVOFF, sVT, sVT + 3, 1024 * i), ('u', j))

    c('Q loads')
    for u in range(2):
        for s in range(4):
            r = vQ + (u * 4 + s) * 4
            g.load('buffer_load_dwordx4 v[%d:%d], v10, s[%d:%d], %s offen offset:%d' %
                   (r, r + 3, sQ, sQ + 3, ('s%d' % s4096) if u else '0', 64 * s), 'q')
    c('tree K + mask loads')
    slT = free.pop(0)
    for s in range(4):
        g.load('buffer_load_dwordx4 v[%d:%d], v%d, s[%d:%d], 0 offen offset:%d' %
               (slT + 4 * s, slT + 4 * s + 3, kvo(s), sKT, sKT + 3, kio(s)), 'kt')
    g.load('buffer_load_ushort v%d, v11, s[%d:%d], 0 offen' % (vADD0, sMK, sMK + 3), 'mk')
    g.load('buffer_load_ushort v%d, v11, s[%d:%d], 0 offen offset:8' % (vADD1, sMK, sMK + 3), 'mk')
    nxt = 0
    while free:
        issue_unit(nxt); nxt += 1
    def mf(d, a, b, cc, k16=False):
        if k16:
            e('v_mfma_f32_16x16x16_bf16 v[%d:%d], v[%d:%d], v[%d:%d], %s' % (d, d + 3, a, a + 1, b, b + 1, cc))
        else:
            e('v_mfma_f32_16x16x32_bf16 v[%d:%d], v[%d:%d], v[%d:%d], %s' % (d, d + 3, a, a + 3, b, b + 3, cc))
    def acc(d): return 'v[%d:%d]' % (d, d + 3)
    def qk(sl, dst, tmp):
        if KP != 2:
            for u in range(2):
                for s in range(4):
                    mf(dst[u], sl + 4 * s, vQ + (u * 4 + s) * 4, '0' if s == 0 else acc(dst[u]))
            return
        e('s_mov_b64 exec, s[62:63]')
        for h in range(2):
            for k in range(4):
                e('v_swap_b32 v%d, v%d' % (sl + 8 * h + k, sl + 8 * h + 4 + k))
        e('s_mov_b64 exec, -1')
        e('s_nop 1')
        for u in range(2):
            for x in range(2):
                d = dst[u] if x == 0 else tmp[u]
                for h in range(2):
                    s = 2 * h + x
                    mf(d, sl + 4 * s, vQ + (u * 4 + s) * 4, '0' if h == 0 else acc(d))
    def qk_fix(dst, tmp, rs=range(4)):
        if KP != 2: return
        for u in range(2):
            for r in rs:
                e('v_add_f32 v%d, v%d, v%d' % (dst[u] + r, dst[u] + r, tmp[u] + (r ^ 1)))
    c('tree QK')
    stamp()
    g.wait(['q', 'kt', 'mk'])
    stamp()
    vTT = vS + 7 * 16
    qk(slT, [vTT, vTT + 4], [vTT + 8, vTT + 12])
    free.append(slT)
    issue_unit(nxt); nxt += 1
    e('v_lshlrev_b32 v%d, 16, v%d' % (vADD0, vADD0))
    e('v_lshlrev_b32 v%d, 16, v%d' % (vADD1, vADD1))
    e('v_sub_f32 v%d, 1.0, v%d' % (vADD0, vADD0))
    e('v_sub_f32 v%d, 1.0, v%d' % (vADD1, vADD1))
    e('v_mul_f32 v%d, s%d, v%d' % (vADD0, sBIG, vADD0))
    e('v_mul_f32 v%d, s%d, v%d' % (vADD1, sBIG, vADD1))
    e('s_cmp_eq_u32 s%d, 0' % sWAVE)
    e('s_cbranch_scc1 L_w0')
    e('v_mov_b32 v%d, 0xff800000' % vADD0)
    e('v_mov_b32 v%d, 0xff800000' % vADD1)
    g.lab('L_w0')
    e('s_nop 4')
    qk_fix([vTT, vTT + 4], [vTT + 8, vTT + 12], range(2))
    e('v_add_f32 v%d, v%d, v%d' % (vTS + 0, vTT + 0, vADD0))
    e('v_add_f32 v%d, v%d, v%d' % (vTS + 1, vTT + 1, vADD1))
    e('v_add_f32 v%d, v%d, v%d' % (vTS + 2, vTT + 4, vADD0))
    e('v_add_f32 v%d, v%d, v%d' % (vTS + 3, vTT + 5, vADD1))

    c('K phase')
    for t in range(16):
        b, tau = t // 2, t % 2
        g.wait([('u', t)])
        sl = unit_slot[t]
        dst = [vS + b * 16 + u * 8 + tau * 4 for u in range(2)]
        tmp = [vTMP + (t % 2) * 8 + u * 4 for u in range(2)] if KP == 2 else None
        qk(sl, dst, tmp)
        if t > 0: qk_fix(*prev)
        prev = (dst, tmp)
        free.append(sl)
        if t == 15:
            free.append(vQ)
        if BAR and (t % BAR) == BAR - 1: e('s_barrier')
        while free and nxt <= 32:
            issue_unit(nxt); nxt += 1

    stamp()
    c('softmax: max')
    e('s_nop 7')
    qk_fix(*prev)
    if KP == 2:
        free.append(vTMP)
        while free and nxt <= 32:
            issue_unit(nxt); nxt += 1
    for u in range(2):
        vals = [vS + b * 16 + u * 8 + k for b in range(8) for k in range(8)] + [vTS + 2 * u, vTS + 2 * u + 1]
        e('v_max_f32 v%d, v%d, v%d' % (vM[u], vals[0], vals[1]))
        for k in range(2, len(vals), 2):
            e('v_max3_f32 v%d, v%d, v%d, v%d' % (vM[u], vM[u], vals[k], vals[k + 1]))
    def xreduce(regs, op):
        tmps = [vT0, vT1]
        for sw in ('v_permlane16_swap_b32', 'v_permlane32_swap_b32'):
            for r, t in zip(regs, tmps):
                e('v_mov_b32 v%d, v%d' % (t, r))
            e('s_nop 1')
            for r, t in zip(regs, tmps):
                e('%s v%d, v%d' % (sw, r, t))
            e('s_nop 1')
            for r, t in zip(regs, tmps):
                e('%s v%d, v%d, v%d' % (op, r, r, t))
    xreduce(vM, 'v_max_f32')
    c('softmax: exp / sum / pack')
    vMC = [vVT, vVT + 1]
    for u in range(2):
        e('v_mul_f32 v%d, s%d, v%d' % (vMC[u], sC, vM[u]))
        e('v_mov_b32 v%d, 0' % vL[u])
    for u in range(2):
        for k in range(2):
            r = vTS + 2 * u + k
            e('v_fma_f32 v%d, v%d, s%d, -v%d' % (r, r, sC, vMC[u]))
    for r in range(vTS, vTS + 4):
        e('v_exp_f32 v%d, v%d' % (r, r))
    e('s_nop 0')
    for u in range(2):
        e('v_add_f32 v%d, v%d, v%d' % (vVT + 2 + u, vTS + 2 * u, vTS + 2 * u + 1))
    e('v_cvt_pk_bf16_f32 v%d, v%d, v%d' % (vTS, vTS, vTS + 1))
    e('v_mov_b32 v%d, 0' % (vTS + 1))
    e('v_cvt_pk_bf16_f32 v%d, v%d, v%d' % (vTS + 2, vTS + 2, vTS + 3))
    e('v_mov_b32 v%d, 0' % (vTS + 3))
    vL2 = [vVT + 2, vVT + 3]
    for b in range(8):
        for u in range(2):
            base = vS + b * 16 + u * 8
            for k in range(8):
                e('v_fma_f32 v%d, v%d, s%d, -v%d' % (base + k, base + k, sC, vMC[u]))
            for k in range(8):
                e('v_exp_f32 v%d, v%d' % (base + k, base + k))
            for k in range(0, 8, 2):
                e('v_add_f32 v%d, v%d, v%d' % (vL[u], vL[u], base + k))
                e('v_add_f32 v%d, v%d, v%d' % (vL2[u], vL2[u], base + k + 1))
            for k in range(4):
                e('v_cvt_pk_bf16_f32 v%d, v%d, v%d' % (vP + b * 8 + u * 4 + k, base + 2 * k, base + 2 * k + 1))
    for u in range(2):
        e('v_add_f32 v%d, v%d, v%d' % (vL[u], vL[u], vL2[u]))
    xreduce(vL, 'v_add_f32')

    stamp()
    c('V phase')
    for b in range(8):
        g.wait([('u', 16 + 2 * b), ('u', 17 + 2 * b)])
        sa, sb = unit_slot[16 + 2 * b], unit_slot[17 + 2 * b]
        rows = [sa + 4 * i for i in range(4)] + [sb + 4 * i for i in range(4)]
        for cc in range(4):
            tb = vVT + (cc % 2) * 8
            for p in range(4):
                e('v_perm_b32 v%d, v%d, v%d, s%d' % (tb + p, rows[2 * p + 1] + cc, rows[2 * p] + cc, sPLO))
            for p in range(4):
                e('v_perm_b32 v%d, v%d, v%d, s%d' % (tb + 4 + p, rows[2 * p + 1] + cc, rows[2 * p] + cc, sPHI))
            for h in range(2):
                j = 2 * cc + h
                for u in range(2):
                    d = vO + (j * 2 + u) * 4
                    mf(d, tb + 4 * h, vP + b * 8 + u * 4, '0' if b == 0 else acc(d))
        free.append(sa); free.append(sb)
        if BAR and b < 7 and ((2 * b + 1) % BAR) == BAR - 1 or BAR == 1 and b < 7: e('s_barrier')
        while free and nxt <= 32:
            issue_unit(nxt); nxt += 1
    c('tree PV')
    g.wait([('u', 32)])
    sa = unit_slot[32]
    for cc in range(4):
        tb = vVT + (cc % 2) * 8
        e('v_perm_b32 v%d, v%d, v%d, s%d' % (tb, sa + 4 + cc, sa + cc, sPLO))
        e('v_mov_b32 v%d, 0' % (tb + 1))
        e('v_perm_b32 v%d, v%d, v%d, s%d' % (tb + 2, sa + 4 + cc, sa + cc, sPHI))
        e('v_mov_b32 v%d, 0' % (tb + 3))
        e('s_nop 1')
        for h in range(2):
            j = 2 * cc + h
            for u in range(2):
                d = vO + (j * 2 + u) * 4
                mf(d, tb + 2 * h, vTS + 2 * u, acc(d), k16=True)

    stamp()
    c('combine through LDS')
    ROW = 528; WSZ = 32 * ROW; MLB = NW * WSZ
    vA = vRING; vB = vRING + 1; vC = vRING + 2; vD = vRING + 3
    e('v_and_b32 v%d, 63, v0' % vA)
    e('v_and_b32 v%d, 15, v%d' % (vB, vA))
    e('v_lshrrev_b32 v%d, 4, v%d' % (vC, vA))
    e('v_mul_u32_u24 v%d, %d, v%d' % (vD, ROW, vB))
    e('v_lshl_add_u32 v%d, v%d, 7, v%d' % (vD, vC, vD))
    e('s_mul_i32 s%d, s%d, %d' % (sT, sWAVE, WSZ))
    e('v_add_u32 v%d, s%d, v%d' % (vD, sT, vD))
    e('s_lshl_b32 s%d, s%d, 8' % (sT, sWAVE))
    e('s_add_u32 s%d, s%d, %d' % (sT, sT, MLB))
    e('v_lshlrev_b32 v%d, 3, v%d' % (vB, vB))
    e('v_add_u32 v%d, s%d, v%d' % (vB, sT, vB))
    vML = vRING + 4
    for u in range(2):
        e('v_mov_b32 v%d, v%d' % (vML + 2 * u, vM[u]))
        e('v_mov_b32 v%d, v%d' % (vML + 2 * u + 1, vL[u]))
    for u in range(2):
        e('ds_write_b64 v%d, v[%d:%d] offset:%d' % (vB, vML + 2 * u, vML + 2 * u + 1, u * 128))
    e('s_nop 4')
    for u in range(2):
        for j in range(8):
            d = vO + (j * 2 + u) * 4
            e('ds_write_b128 v%d, v[%d:%d] offset:%d' % (vD, d, d + 3, u * 16 * ROW + j * 16))
    e('s_waitcnt lgkmcnt(0)')
    stamp()
    e('s_barrier')
    stamp()
    e('v_lshrrev_b32 v%d, 4, v0' % vA)
    e('v_and_b32 v%d, 15, v0' % vB)
    e('v_mul_u32_u24 v%d, %d, v%d' % (vC, ROW, vA))
    e('v_lshl_add_u32 v%d, v%d, 5, v%d' % (vC, vB, vC))
    e('v_lshlrev_b32 v%d, 3, v%d' % (vD, vA))
    e('v_add_u32 v%d, %d, v%d' % (vD, MLB, vD))
    vR = 16
    for w in range(NW):
        e('ds_read_b64 v[%d:%d], v%d offset:%d' % (vR + 2 * w, vR + 2 * w + 1, vD, w * 256))
    vX = 32
    vC2 = vRING + 8
    e('v_add_u32 v%d, %d, v%d' % (vC2, 4 * WSZ, vC))
    for w in range(NW):
        base = vC if w < 4 else vC2
        off = (w % 4) * WSZ
        e('ds_read_b128 v[%d:%d], v%d offset:%d' % (vX + 8 * w, vX + 8 * w + 3, base, off))
        e('ds_read_b128 v[%d:%d], v%d offset:%d' % (vX + 8 * w + 4, vX + 8 * w + 7, base, off + 16))
    e('s_waitcnt lgkmcnt(15)')
    e('s_waitcnt lgkmcnt(0)')
    vMM = vRING + 9; vLL = vRING + 10; vF = vRING + 16
    e('v_max_f32 v%d, v%d, v%d' % (vMM, vR, vR + 2))
    for w in range(2, NW, 2):
        e('v_max3_f32 v%d, v%d, v%d, v%d' % (vMM, vMM, vR + 2 * w, vR + 2 * w + 2))
    for w in range(NW):
        e('v_sub_f32 v%d, v%d, v%d' % (vF + w, vR + 2 * w, vMM))
    for w in range(NW):
        e('v_mul_f32 v%d, s%d, v%d' % (vF + w, sC, vF + w))
    for w in range(NW):
        e('v_exp_f32 v%d, v%d' % (vF + w, vF + w))
    e('s_nop 0')
    e('v_mul_f32 v%d, v%d, v%d' % (vLL, vF, vR + 1))
    for w in range(1, NW):
        e('v_fma_f32 v%d, v%d, v%d, v%d' % (vLL, vF + w, vR + 2 * w + 1, vLL))
    e('v_rcp_f32 v%d, v%d' % (vLL, vLL))
    e('s_nop 0')
    for w in range(NW):
        e('v_mul_f32 v%d, v%d, v%d' % (vF + w, vF + w, vLL))
    vY = vRING + 32
    for k in range(8):
        e('v_mul_f32 v%d, v%d, v%d' % (vY + k, vF, vX + k))
    for w in range(1, NW):
        for k in range(8):
            e('v_fma_f32 v%d, v%d, v%d, v%d' % (vY + k, vF + w, vX + 8 * w + k, vY + k))
    e('v_lshrrev_b32 v%d, 2, v%d' % (vC, vB))
    e('v_and_b32 v%d, 3, v%d' % (vD, vB))
    e('v_lshlrev_b32 v%d, 8, v%d' % (vA, vA))
    e('v_lshl_add_u32 v%d, v%d, 6, v%d' % (vA, vC, vA))
    e('v_lshl_add_u32 v%d, v%d, 2, v%d' % (vA, vD, vA))
    for r in range(4):
        e('v_cvt_pk_bf16_f32 v%d, v%d, v%d' % (vY + 8 + r, vY + r, vY + 4 + r))
    for r in range(4):
        e('buffer_store_dword v%d, v%d, s[%d:%d], 0 offen offset:%d' % (vY + 8 + r, vA, sOUT, sOUT + 3, 16 * r))
    if STAMP:
        e('s_waitcnt vmcnt(0)')
        stamp()
    if STAMP and not opts.get('dbg'):
        e('s_load_dwordx2 s[36:37], s[0:1], 64')
        e('s_lshl_b32 s%d, s2, 3' % sT)
        e('s_add_u32 s%d, s%d, s%d' % (sT, sT, sWAVE))
        e('s_lshl_b32 s%d, s%d, 6' % (sT, sT))
        e('s_waitcnt lgkmcnt(0)')
        e('s_add_u32 s36, s36, s%d' % sT)
        e('s_addc_u32 s37, s37, 0')
        e('s_mov_b32 s38, 64')
        e('s_mov_b32 s39, 0x00020000')
        e('v_mov_b32 v1, 0')
        for k in range(nst[0]):
            e('v_mov_b32 v2, s%d' % (64 + 2 * k))
            e('buffer_store_dword v2, v1, s[36:39], 0 offen offset:%d' % (4 * k))
            e('s_nop 1')
    if opts.get('dbg'):
        e('s_cmp_lg_u32 s2, %d' % int(opts['dbg']))
        e('s_cbranch_scc1 L_end')
        e('s_and_b32 s%d, s%d, 7' % (sT, sWAVE))
        e('s_cmp_eq_u32 s%d, 0' % sT)
        e('s_cbranch_scc1 L_dbg')
        e('s_cmp_lg_u32 s%d, 7' % sT)
        e('s_cbranch_scc1 L_end')
        g.lab('L_dbg')
        e('s_lshr_b32 s%d, s%d, 2' % (sT, sT))
        e('s_lshl_b32 s%d, s%d, 5' % (sT, sT))
        e('s_mov_b32 s36, s50'); e('s_mov_b32 s37, s51'); e('s_mov_b32 s38, 256'); e('s_mov_b32 s39, 0x00020000')
        e('v_mov_b32 v1, s%d' % sT)
        for k, st in enumerate([0, 2, 3, 4, 5, 6, 7, 8]):
            e('v_mov_b32 v2, s%d' % (64 + 2 * st))
            e('buffer_store_dword v2, v1, s[36:39], 0 offen offset:%d' % (4 * k))
            e('s_nop 1')
    g.lab('L_end')
    e('s_endpgm')
    lds = MLB + NW * 256
    out = HDR + '; @launch grid=(256,1,1) block=(512,1,1) lds=%d\n' % lds
    out += '.amdgcn_target "amdgcn-amd-amdhsa--gfx950"\n.text\n.globl %s_kernel\n.p2align 8\n.type %s_kernel,@function\n%s_kernel:\n' % (NAME, NAME, NAME)
    out += '\n'.join(g.l) + '\n'
    out += '''.section .rodata,"a"
.p2align 6
.amdhsa_kernel %s_kernel
  .amdhsa_next_free_vgpr 256
  .amdhsa_next_free_sgpr 96
  .amdhsa_accum_offset 256
  .amdhsa_group_segment_fixed_size 0
  .amdhsa_kernarg_size 72
  .amdhsa_user_sgpr_count 2
  .amdhsa_user_sgpr_kernarg_segment_ptr 1
  .amdhsa_system_sgpr_workgroup_id_x 1
.end_amdhsa_kernel
''' % NAME
    return out

if __name__ == '__main__':
    path = sys.argv[1] if len(sys.argv) > 1 else 'cdna_kernels/%s.s' % NAME
    opts = dict(a.split('=') for a in sys.argv[2:])
    opts = {k: v.replace('+', ' ') for k, v in opts.items()}
    open(path, 'w').write(gen(opts))
```

```python
import sys, struct, math
NAME = "standalone__tree_speculative_verify_tree_attention_over_candidate_token_tree__sampling"
HDR = open('cdna_kernels/%s.s.ref' % NAME).read().split('; @launch')[0]
def f32(x): return struct.unpack('<I', struct.pack('<f', x))[0]

class G:
    def __init__(s): s.l = []; s.vm = []
    def e(s, t): s.l.append('    ' + t)
    def c(s, t): s.l.append('    ; ' + t)
    def lab(s, t): s.l.append(t + ':')
    def load(s, t, tag): s.e(t); s.vm.append(tag)
    def wait(s, tags):
        idx = [i for i, t in enumerate(s.vm) if t in tags]
        if not idx: return
        last = max(idx)
        s.e('s_waitcnt vmcnt(%d)' % (len(s.vm) - 1 - last))
        s.vm = s.vm[last + 1:]

def gen(opts):
    NW = 8
    FLK = (' ' + opts.get('fk', '')).rstrip(); FLV = (' ' + opts.get('fv', 'nt')).rstrip()
    PRIO = int(opts.get('prio', 0)); STAMP = int(opts.get('stamp', 0)); GROW = int(opts.get('grow', 1))
    g = G(); e, c = g.e, g.c
    vKOFF = 1; vVOFF = 2; vADD0 = 3; vADD1 = 4; vKOFF1 = 5
    vTS = 6
    vM = [10, 12]; vL = [11, 13]
    vT0 = 14; vT1 = 15
    vQ = 16; vVT = 32; vS = 48; vRING = 176
    slots = [vRING + 16 * i for i in range(4)]
    vTMP = vRING + 64
    vP = vS; vO = vS + 64
    vWA = 1; vMLA = 5; vRA = 3; vRB = 4; vRM = 14; vOA = 15
    sWAVE = 3
    sQ, sK, sV, sKT, sVT, sMK, sOUT = 8, 12, 16, 20, 24, 28, 32
    sPTR = 36
    sC = 52; sPLO = 53; sPHI = 54; s4096 = 55; sOFFK = 56; sOFFV = 57; sT = 58; sT2 = 59; sBIG = 60; sODD = 62
    SCALE = 128 ** -0.5; CEXP = SCALE * math.log2(math.e); BIG = -1e9 / SCALE
    ROW = 528; WSZ = 32 * ROW; MLB = NW * WSZ
    nst = [0]
    def stamp():
        if not STAMP: return
        e('s_memrealtime s[%d:%d]' % (64 + 2 * nst[0], 65 + 2 * nst[0])); e('s_waitcnt lgkmcnt(0)'); nst[0] += 1

    e('s_cmp_ge_u32 s2, 256')
    e('s_cbranch_scc1 L_end')
    stamp()
    e('s_load_dwordx16 s[%d:%d], s[0:1], 0' % (sPTR, sPTR + 15))
    e('v_lshrrev_b32 v%d, 6, v0' % vT0)
    e('v_and_b32 v%d, 63, v0' % vT1)
    e('v_readfirstlane_b32 s%d, v%d' % (sWAVE, vT0))
    e('v_lshlrev_b32 v%d, 4, v%d' % (vVOFF, vT1))
    e('v_lshrrev_b32 v22, 4, v%d' % vT1)
    e('v_lshlrev_b32 v23, 4, v22')
    c('K voffsets: slot = 2a+l ; key row = 4*(slot&3) + (slot>>2) ; + ((mu^l)*64) + g*16')
    for ll, dst in ((0, vKOFF), (1, vKOFF1)):
        e('v_and_b32 v20, 14, v%d' % vT1); e('v_or_b32 v20, %d, v20' % ll)
        e('v_and_b32 v21, 3, v20'); e('v_lshlrev_b32 v21, 10, v21'); e('v_bfe_u32 v20, v20, 2, 2'); e('v_lshl_add_u32 v21, v20, 8, v21')
        e('v_and_b32 v20, 1, v%d' % vT1); e('v_xor_b32 v20, %d, v20' % ll); e('v_lshl_add_u32 v21, v20, 6, v21')
        e('v_add_u32 v%d, v21, v23' % dst)
    c('Q voffset (v10) = n*256 + g*16 ; mask voffset (v11) = (n&7)*16 + g*2')
    e('v_and_b32 v20, 15, v%d' % vT1)
    e('v_lshl_add_u32 v10, v20, 8, v23')
    e('v_and_b32 v20, 7, v%d' % vT1)
    e('v_lshlrev_b32 v21, 1, v22')
    e('v_lshl_add_u32 v11, v20, 4, v21')
    e('s_mov_b32 s%d, 0x%08x' % (sC, f32(CEXP)))
    e('s_mov_b32 s%d, 0x05040100' % sPLO)
    e('s_mov_b32 s%d, 0x07060302' % sPHI)
    e('s_mov_b32 s%d, 4096' % s4096)
    e('s_mov_b32 s%d, 0x%08x' % (sBIG, f32(BIG)))
    e('s_mov_b32 s%d, 0xaaaaaaaa' % sODD); e('s_mov_b32 s%d, 0xaaaaaaaa' % (sODD + 1))
    e('s_lshl_b32 s%d, s2, 19' % sT)
    e('s_lshl_b32 s%d, s%d, 12' % (sT2, sWAVE))
    e('s_add_u32 s%d, s%d, s%d' % (sT, sT, sT2))
    e('s_mov_b32 s%d, 0' % sOFFK)
    e('s_mov_b32 s%d, 0' % sOFFV)
    e('s_waitcnt lgkmcnt(0)')
    def srd(d, p, off_sgpr, nrec):
        e('s_add_u32 s%d, s%d, s%d' % (d, sPTR + 2 * p, off_sgpr))
        e('s_addc_u32 s%d, s%d, 0' % (d + 1, sPTR + 2 * p + 1))
        e('s_mov_b32 s%d, %d' % (d + 2, nrec))
        e('s_mov_b32 s%d, 0x00020000' % (d + 3))
    STEP = 32768
    srd(sK, 1, sT, 524288 - 28672)
    srd(sV, 2, sT, 524288 - 28672)
    e('s_lshl_b32 s%d, s2, 13' % sT)
    srd(sQ, 0, sT, 8192)
    srd(sOUT, 6, sT, 8192)
    e('s_lshl_b32 s%d, s2, 11' % sT)
    srd(sKT, 3, sT, 2048)
    srd(sVT, 4, sT, 2048)
    e('s_lshr_b32 s%d, s2, 3' % sT)
    e('s_lshl_b32 s%d, s%d, 7' % (sT, sT))
    srd(sMK, 5, sT, 128)

    free = list(slots); unit_slot = {}
    kvo = lambda s: vKOFF1 if (s & 1) else vKOFF
    kio = lambda s: 128 * (s >> 1)
    NU = 33
    def issue_unit(j):
        sl = free.pop(0); unit_slot[j] = sl
        if j < 16:
            for s in range(4):
                g.load('buffer_load_dwordx4 v[%d:%d], v%d, s[%d:%d], s%d offen offset:%d%s' %
                       (sl + 4 * s, sl + 4 * s + 3, kvo(s), sK, sK + 3, sOFFK, kio(s), FLK), ('u', j))
            e('s_add_u32 s%d, s%d, %d' % (sOFFK, sOFFK, STEP))
        elif j == 16:
            for i in range(2):
                g.load('buffer_load_dwordx4 v[%d:%d], v%d, s[%d:%d], 0 offen offset:%d' %
                       (sl + 4 * i, sl + 4 * i + 3, vVOFF, sVT, sVT + 3, 1024 * i), ('u', j))
        else:
            for i in range(4):
                g.load('buffer_load_dwordx4 v[%d:%d], v%d, s[%d:%d], s%d offen offset:%d%s' %
                       (sl + 4 * i, sl + 4 * i + 3, vVOFF, sV, sV + 3, sOFFV, 1024 * i, FLV), ('u', j))
            e('s_add_u32 s%d, s%d, %d' % (sOFFV, sOFFV, STEP))
    nxt = [0]
    def fill():
        while free and nxt[0] < NU:
            issue_unit(nxt[0]); nxt[0] += 1
    if PRIO: e('s_setprio 3')
    c('Q loads')
    for u in range(2):
        for s in range(4):
            r = vQ + (u * 4 + s) * 4
            g.load('buffer_load_dwordx4 v[%d:%d], v10, s[%d:%d], %s offen offset:%d' %
                   (r, r + 3, sQ, sQ + 3, ('s%d' % s4096) if u else '0', 64 * s), 'q')
    c('tree K + mask loads')
    slT = free.pop(0)
    for s in range(4):
        g.load('buffer_load_dwordx4 v[%d:%d], v%d, s[%d:%d], 0 offen offset:%d' %
               (slT + 4 * s, slT + 4 * s + 3, kvo(s), sKT, sKT + 3, kio(s)), 'kt')
    g.load('buffer_load_ushort v%d, v11, s[%d:%d], 0 offen' % (vADD0, sMK, sMK + 3), 'mk')
    g.load('buffer_load_ushort v%d, v11, s[%d:%d], 0 offen offset:8' % (vADD1, sMK, sMK + 3), 'mk')
    fill()
    def mf(d, a, b, cc, k16=False):
        if k16: e('v_mfma_f32_16x16x16_bf16 v[%d:%d], v[%d:%d], v[%d:%d], %s' % (d, d + 3, a, a + 1, b, b + 1, cc))
        else: e('v_mfma_f32_16x16x32_bf16 v[%d:%d], v[%d:%d], v[%d:%d], %s' % (d, d + 3, a, a + 3, b, b + 3, cc))
    acc = lambda d: 'v[%d:%d]' % (d, d + 3)
    def qk(sl, dst, tmp):
        e('s_mov_b64 exec, s[%d:%d]' % (sODD, sODD + 1))
        for h in range(2):
            for k in range(4):
                e('v_swap_b32 v%d, v%d' % (sl + 8 * h + k, sl + 8 * h + 4 + k))
        e('s_mov_b64 exec, -1')
        e('s_nop 1')
        for u in range(2):
            for x in range(2):
                d = dst[u] if x == 0 else tmp[u]
                for h in range(2):
                    s = 2 * h + x
                    mf(d, sl + 4 * s, vQ + (u * 4 + s) * 4, '0' if h == 0 else acc(d))
    def qk_fix(dst, tmp, rs=range(4)):
        for u in range(2):
            for r in rs:
                e('v_add_f32 v%d, v%d, v%d' % (dst[u] + r, dst[u] + r, tmp[u] + (r ^ 1)))
    c('tree QK')
    stamp()
    g.wait(['q', 'kt', 'mk'])
    stamp()
    vTT = vS + 7 * 16
    qk(slT, [vTT, vTT + 4], [vTT + 8, vTT + 12])
    free.append(slT); fill()
    c('mask term: add = (1 - mask) * (-1e9/scale) ; waves != 0 -> -inf')
    e('v_lshlrev_b32 v%d, 16, v%d' % (vADD0, vADD0))
    e('v_lshlrev_b32 v%d, 16, v%d' % (vADD1, vADD1))
    e('v_sub_f32 v%d, 1.0, v%d' % (vADD0, vADD0))
    e('v_sub_f32 v%d, 1.0, v%d' % (vADD1, vADD1))
    e('v_mul_f32 v%d, s%d, v%d' % (vADD0, sBIG, vADD0))
    e('v_mul_f32 v%d, s%d, v%d' % (vADD1, sBIG, vADD1))
    e('s_cmp_eq_u32 s%d, 0' % sWAVE)
    e('s_cbranch_scc1 L_w0')
    e('v_mov_b32 v%d, 0xff800000' % vADD0)
    e('v_mov_b32 v%d, 0xff800000' % vADD1)
    g.lab('L_w0')
    e('s_nop 4')
    qk_fix([vTT, vTT + 4], [vTT + 8, vTT + 12], range(2))
    e('v_add_f32 v%d, v%d, v%d' % (vTS + 0, vTT + 0, vADD0))
    e('v_add_f32 v%d, v%d, v%d' % (vTS + 1, vTT + 1, vADD1))
    e('v_add_f32 v%d, v%d, v%d' % (vTS + 2, vTT + 4, vADD0))
    e('v_add_f32 v%d, v%d, v%d' % (vTS + 3, vTT + 5, vADD1))

    c('K phase')
    for t in range(16):
        b, tau = t // 2, t % 2
        g.wait([('u', t)])
        sl = unit_slot[t]
        dst = [vS + b * 16 + u * 8 + tau * 4 for u in range(2)]
        tmp = [vTMP + (t % 2) * 8 + u * 4 for u in range(2)]
        qk(sl, dst, tmp)
        if t > 0: qk_fix(*prev)
        prev = (dst, tmp)
        free.append(sl)
        if t == 15: free.append(vQ)
        if PRIO == 1 and t == 7: e('s_setprio 2')
        if PRIO == 1 and t == 15: e('s_setprio 1')
        fill()
    stamp()
    c('softmax: max')
    e('s_nop 7')
    qk_fix(*prev)
    free.append(vTMP); fill()
    for u in range(2):
        vals = [vS + b * 16 + u * 8 + k for b in range(8) for k in range(8)] + [vTS + 2 * u, vTS + 2 * u + 1]
        e('v_max_f32 v%d, v%d, v%d' % (vM[u], vals[0], vals[1]))
        for k in range(2, len(vals), 2):
            e('v_max3_f32 v%d, v%d, v%d, v%d' % (vM[u], vM[u], vals[k], vals[k + 1]))
    def xreduce(regs, op):
        tmps = [vT0, vT1]
        for sw in ('v_permlane16_swap_b32', 'v_permlane32_swap_b32'):
            for r, t in zip(regs, tmps): e('v_mov_b32 v%d, v%d' % (t, r))
            e('s_nop 1')
            for r, t in zip(regs, tmps): e('%s v%d, v%d' % (sw, r, t))
            e('s_nop 1')
            for r, t in zip(regs, tmps): e('%s v%d, v%d, v%d' % (op, r, r, t))
    xreduce(vM, 'v_max_f32')
    c('softmax: exp / sum / pack')
    vMC = [vVT, vVT + 1]; vL2 = [vVT + 2, vVT + 3]
    for u in range(2):
        e('v_mul_f32 v%d, s%d, v%d' % (vMC[u], sC, vM[u]))
        e('v_mov_b32 v%d, 0' % vL[u])
    for u in range(2):
        for k in range(2):
            r = vTS + 2 * u + k
            e('v_fma_f32 v%d, v%d, s%d, -v%d' % (r, r, sC, vMC[u]))
    for r in range(vTS, vTS + 4): e('v_exp_f32 v%d, v%d' % (r, r))
    e('s_nop 0')
    for u in range(2): e('v_add_f32 v%d, v%d, v%d' % (vL2[u], vTS + 2 * u, vTS + 2 * u + 1))
    e('v_cvt_pk_bf16_f32 v%d, v%d, v%d' % (vTS, vTS, vTS + 1))
    e('v_mov_b32 v%d, 0' % (vTS + 1))
    e('v_cvt_pk_bf16_f32 v%d, v%d, v%d' % (vTS + 2, vTS + 2, vTS + 3))
    e('v_mov_b32 v%d, 0' % (vTS + 3))
    for b in range(8):
        for u in range(2):
            base = vS + b * 16 + u * 8
            for k in range(8): e('v_fma_f32 v%d, v%d, s%d, -v%d' % (base + k, base + k, sC, vMC[u]))
            for k in range(8): e('v_exp_f32 v%d, v%d' % (base + k, base + k))
            for k in range(0, 8, 2):
                e('v_add_f32 v%d, v%d, v%d' % (vL[u], vL[u], base + k))
                e('v_add_f32 v%d, v%d, v%d' % (vL2[u], vL2[u], base + k + 1))
            for k in range(4):
                e('v_cvt_pk_bf16_f32 v%d, v%d, v%d' % (vP + b * 8 + u * 4 + k, base + 2 * k, base + 2 * k + 1))
    for u in range(2): e('v_add_f32 v%d, v%d, v%d' % (vL[u], vL[u], vL2[u]))
    xreduce(vL, 'v_add_f32')
    c('LDS / output addresses; publish (m,l)')
    a0, a1, a2 = vVT, vVT + 1, vVT + 2
    e('v_lshrrev_b32 v%d, 4, v%d' % (a0, vVOFF))
    e('v_and_b32 v%d, 15, v%d' % (a1, a0))
    e('v_lshrrev_b32 v%d, 4, v%d' % (a2, a0))
    e('v_mul_u32_u24 v%d, %d, v%d' % (vWA, ROW, a1))
    e('v_lshl_add_u32 v%d, v%d, 7, v%d' % (vWA, a2, vWA))
    e('s_mul_i32 s%d, s%d, %d' % (sT, sWAVE, WSZ))
    e('v_add_u32 v%d, s%d, v%d' % (vWA, sT, vWA))
    e('s_lshl_b32 s%d, s%d, 8' % (sT, sWAVE))
    e('s_add_u32 s%d, s%d, %d' % (sT, sT, MLB))
    e('v_lshlrev_b32 v%d, 3, v%d' % (vMLA, a1))
    e('v_add_u32 v%d, s%d, v%d' % (vMLA, sT, vMLA))
    for u in range(2):
        e('ds_write_b64 v%d, v[%d:%d] offset:%d' % (vMLA, vM[u], vL[u], u * 128))
    e('v_lshrrev_b32 v%d, 4, v0' % a0)
    e('v_and_b32 v%d, 15, v0' % a1)
    e('v_mul_u32_u24 v%d, %d, v%d' % (vRA, ROW, a0))
    e('v_lshl_add_u32 v%d, v%d, 5, v%d' % (vRA, a1, vRA))
    e('v_add_u32 v%d, %d, v%d' % (vRB, 4 * WSZ, vRA))
    e('v_lshlrev_b32 v%d, 3, v%d' % (vRM, a0))
    e('v_add_u32 v%d, %d, v%d' % (vRM, MLB, vRM))
    e('v_lshlrev_b32 v%d, 8, v%d' % (vOA, a0))
    e('v_lshrrev_b32 v%d, 2, v%d' % (a2, a1))
    e('v_lshl_add_u32 v%d, v%d, 6, v%d' % (vOA, a2, vOA))
    e('v_and_b32 v%d, 3, v%d' % (a2, a1))
    e('v_lshl_add_u32 v%d, v%d, 2, v%d' % (vOA, a2, vOA))
    stamp()
    c('tree PV (initialises O)')
    g.wait([('u', 16)])
    sa = unit_slot[16]
    for cc in range(4):
        tb = vVT + (cc % 2) * 8
        e('v_perm_b32 v%d, v%d, v%d, s%d' % (tb, sa + 4 + cc, sa + cc, sPLO))
        e('v_mov_b32 v%d, 0' % (tb + 1))
        e('v_perm_b32 v%d, v%d, v%d, s%d' % (tb + 2, sa + 4 + cc, sa + cc, sPHI))
        e('v_mov_b32 v%d, 0' % (tb + 3))
        e('s_nop 1')
        for h in range(2):
            for u in range(2):
                mf(vO + ((2 * cc + h) * 2 + u) * 4, tb + 2 * h, vTS + 2 * u, '0', k16=True)
    free.append(sa); fill()
    c('V phase')
    def owrite(cc):
        for h in range(2):
            for u in range(2):
                j = 2 * cc + h; d = vO + (j * 2 + u) * 4
                e('ds_write_b128 v%d, v[%d:%d] offset:%d' % (vWA, d, d + 3, u * 16 * ROW + j * 16))
    for b in range(8):
        g.wait([('u', 17 + 2 * b), ('u', 18 + 2 * b)])
        sa, sb = unit_slot[17 + 2 * b], unit_slot[18 + 2 * b]
        rows = [sa + 4 * i for i in range(4)] + [sb + 4 * i for i in range(4)]
        for cc in range(4):
            tb = vVT + (cc % 2) * 8
            for p in range(4):
                e('v_perm_b32 v%d, v%d, v%d, s%d' % (tb + p, rows[2 * p + 1] + cc, rows[2 * p] + cc, sPLO))
            for p in range(4):
                e('v_perm_b32 v%d, v%d, v%d, s%d' % (tb + 4 + p, rows[2 * p + 1] + cc, rows[2 * p] + cc, sPHI))
            if b == 7 and cc > 0: owrite(cc - 1)
            for h in range(2):
                for u in range(2):
                    d = vO + ((2 * cc + h) * 2 + u) * 4
                    mf(d, tb + 4 * h, vP + b * 8 + u * 4, acc(d))
        free.append(sa); free.append(sb)
        if PRIO == 1 and b == 3: e('s_setprio 0')
        if GROW and b % 2 == 1: free.append(vP + (b - 1) * 8)
        fill()
    stamp()
    c('combine through LDS')
    e('s_nop 7')
    owrite(3)
    e('s_waitcnt lgkmcnt(0)')
    stamp()
    e('s_barrier')
    stamp()
    vR = 16; vX = 32; vF = vRING; vMM = vRING + 8; vLL = vRING + 9; vY = vRING + 16
    def rdp(w):
        base = vRA if w < 4 else vRB; off = (w % 4) * WSZ
        e('ds_read_b128 v[%d:%d], v%d offset:%d' % (vX + 8 * w, vX + 8 * w + 3, base, off))
        e('ds_read_b128 v[%d:%d], v%d offset:%d' % (vX + 8 * w + 4, vX + 8 * w + 7, base, off + 16))
    for w in range(NW): e('ds_read_b64 v[%d:%d], v%d offset:%d' % (vR + 2 * w, vR + 2 * w + 1, vRM, w * 256))
    for w in range(3): rdp(w)
    e('s_waitcnt lgkmcnt(6)')
    for w in range(3, 7): rdp(w)
    e('v_max_f32 v%d, v%d, v%d' % (vMM, vR, vR + 2))
    for w in range(2, NW, 2): e('v_max3_f32 v%d, v%d, v%d, v%d' % (vMM, vMM, vR + 2 * w, vR + 2 * w + 2))
    e('v_mul_f32 v%d, s%d, v%d' % (vMM, sC, vMM))
    for w in range(NW): e('v_fma_f32 v%d, v%d, s%d, -v%d' % (vF + w, vR + 2 * w, sC, vMM))
    for w in range(NW): e('v_exp_f32 v%d, v%d' % (vF + w, vF + w))
    e('s_nop 0')
    e('v_mul_f32 v%d, v%d, v%d' % (vLL, vF, vR + 1))
    for w in range(1, NW): e('v_fma_f32 v%d, v%d, v%d, v%d' % (vLL, vF + w, vR + 2 * w + 1, vLL))
    e('v_rcp_f32 v%d, v%d' % (vLL, vLL))
    e('s_waitcnt lgkmcnt(8)')
    rdp(7)
    def pk(w, k):
        f = vF + (w & ~1)
        sel = 'op_sel:[0,1,0] op_sel_hi:[1,1,1]' if (w & 1) else 'op_sel_hi:[1,0,1]'
        if w == 0:
            e('v_pk_mul_f32 v[%d:%d], v[%d:%d], v[%d:%d] op_sel_hi:[1,0]' % (vY + k, vY + k + 1, vX + k, vX + k + 1, f, f + 1))
        else:
            e('v_pk_fma_f32 v[%d:%d], v[%d:%d], v[%d:%d], v[%d:%d] %s' % (vY + k, vY + k + 1, vX + 8 * w + k, vX + 8 * w + k + 1, f, f + 1, vY + k, vY + k + 1, sel))
    for w in range(NW):
        if w >= 3: e('s_waitcnt lgkmcnt(%d)' % (2 * (7 - w)))
        for k in range(0, 8, 2): pk(w, k)
    for k in range(8): e('v_mul_f32 v%d, v%d, v%d' % (vY + k, vY + k, vLL))
    for r in range(4): e('v_cvt_pk_bf16_f32 v%d, v%d, v%d' % (vY + 8 + r, vY + r, vY + 4 + r))
    for r in range(4):
        e('buffer_store_dword v%d, v%d, s[%d:%d], 0 offen offset:%d' % (vY + 8 + r, vOA, sOUT, sOUT + 3, 16 * r))
    if STAMP:
        e('s_waitcnt vmcnt(0)')
        stamp()
        e('s_load_dwordx2 s[36:37], s[0:1], 64')
        e('s_lshl_b32 s%d, s2, 3' % sT); e('s_add_u32 s%d, s%d, s%d' % (sT, sT, sWAVE)); e('s_lshl_b32 s%d, s%d, 6' % (sT, sT))
        e('s_waitcnt lgkmcnt(0)')
        e('s_add_u32 s36, s36, s%d' % sT); e('s_addc_u32 s37, s37, 0'); e('s_mov_b32 s38, 64'); e('s_mov_b32 s39, 0x00020000')
        e('v_mov_b32 v1, 0')
        for k in range(nst[0]):
            e('v_mov_b32 v2, s%d' % (64 + 2 * k))
            e('buffer_store_dword v2, v1, s[36:39], 0 offen offset:%d' % (4 * k)); e('s_nop 1')
    g.lab('L_end')
    e('s_endpgm')
    lds = MLB + NW * 256
    out = HDR + '; @launch grid=(256,1,1) block=(512,1,1) lds=%d\n' % lds
    out += '.amdgcn_target "amdgcn-amd-amdhsa--gfx950"\n.text\n.globl %s_kernel\n.p2align 8\n.type %s_kernel,@function\n%s_kernel:\n' % (NAME, NAME, NAME)
    out += '\n'.join(g.l) + '\n'
    out += '''.section .rodata,"a"
.p2align 6
.amdhsa_kernel %s_kernel
  .amdhsa_next_free_vgpr 256
  .amdhsa_next_free_sgpr %d
  .amdhsa_accum_offset 256
  .amdhsa_group_segment_fixed_size 0
  .amdhsa_kernarg_size 72
  .amdhsa_user_sgpr_count 2
  .amdhsa_user_sgpr_kernarg_segment_ptr 1
  .amdhsa_system_sgpr_workgroup_id_x 1
.end_amdhsa_kernel
''' % (NAME, 96 if STAMP else 64)
    return out

if __name__ == '__main__':
    path = sys.argv[1]
    opts = dict(a.split('=') for a in sys.argv[2:])
    opts = {k: v.replace('+', ' ') for k, v in opts.items()}
    open(path, 'w').write(gen(opts))
```

```python
import sys, struct, math
NAME = "standalone__tree_speculative_verify_tree_attention_over_candidate_token_tree__sampling"
HDR = open('cdna_kernels/%s.s.ref' % NAME).read().split('; @launch')[0]
def f32(x): return struct.unpack('<I', struct.pack('<f', x))[0]

class G:
    def __init__(s): s.l = []; s.vm = []
    def e(s, t): s.l.append('    ' + t)
    def c(s, t): s.l.append('    ; ' + t)
    def lab(s, t): s.l.append(t + ':')
    def load(s, t, tag): s.e(t); s.vm.append(tag)
    def wait(s, tags):
        idx = [i for i, t in enumerate(s.vm) if t in tags]
        if not idx: return
        last = max(idx)
        s.e('s_waitcnt vmcnt(%d)' % (len(s.vm) - 1 - last))
        s.vm = s.vm[last + 1:]

def gen(opts):
    NW = 8
    FLK = (' ' + opts.get('fk', '')).rstrip(); FLV = (' ' + opts.get('fv', 'nt')).rstrip()
    PRIO = int(opts.get('prio', 0)); STAMP = int(opts.get('stamp', 0)); GROW = int(opts.get('grow', 1))
    g = G(); e, c = g.e, g.c
    vKOFF = 1; vVOFF = 2; vADD0 = 3; vADD1 = 4; vKOFF1 = 5
    vTS = 6
    vM = [10, 12]; vL = [11, 13]
    vT0 = 14; vT1 = 15
    vQ = 16; vVT = 32; vS = 48; vRING = 176
    slots = [vRING + 16 * i for i in range(4)]
    vTMP = vRING + 64
    vP = vS; vO = vS + 64
    vWA = 1; vMLA = 5; vRA = 3; vRB = 4; vRM = 14; vOA = 15
    sWAVE = 3
    sQ, sK, sV, sKT, sVT, sMK, sOUT = 8, 12, 16, 20, 24, 28, 32
    sPTR = 36
    sC = 52; sPLO = 53; sPHI = 54; s4096 = 55; sOFFK = 56; sOFFV = 57; sT = 58; sT2 = 59; sBIG = 60; sODD = 62
    SCALE = 128 ** -0.5; CEXP = SCALE * math.log2(math.e); BIG = -1e9 / SCALE
    ROW = 528; WSZ = 32 * ROW; MLB = NW * WSZ
    nst = [0]
    def stamp():
        if not STAMP: return
        e('s_memrealtime s[%d:%d]' % (64 + 2 * nst[0], 65 + 2 * nst[0])); e('s_waitcnt lgkmcnt(0)'); nst[0] += 1

    e('s_cmp_ge_u32 s2, 256')
    e('s_cbranch_scc1 L_end')
    stamp()
    e('s_load_dwordx16 s[%d:%d], s[0:1], 0' % (sPTR, sPTR + 15))
    e('v_lshrrev_b32 v%d, 6, v0' % vT0)
    e('v_and_b32 v%d, 63, v0' % vT1)
    e('v_readfirstlane_b32 s%d, v%d' % (sWAVE, vT0))
    e('v_lshlrev_b32 v%d, 4, v%d' % (vVOFF, vT1))
    e('v_lshrrev_b32 v22, 4, v%d' % vT1)
    e('v_lshlrev_b32 v23, 4, v22')
    c('K voffsets: slot = 2a+l ; key row = 4*(slot&3) + (slot>>2) ; + ((mu^l)*64) + g*16')
    for ll, dst in ((0, vKOFF), (1, vKOFF1)):
        e('v_and_b32 v20, 14, v%d' % vT1); e('v_or_b32 v20, %d, v20' % ll)
        e('v_and_b32 v21, 3, v20'); e('v_lshlrev_b32 v21, 10, v21'); e('v_bfe_u32 v20, v20, 2, 2'); e('v_lshl_add_u32 v21, v20, 8, v21')
        e('v_and_b32 v20, 1, v%d' % vT1); e('v_xor_b32 v20, %d, v20' % ll); e('v_lshl_add_u32 v21, v20, 6, v21')
        e('v_add_u32 v%d, v21, v23' % dst)
    c('Q voffset (v10) = n*256 + g*16 ; mask voffset (v11) = (n&7)*16 + g*2')
    e('v_and_b32 v20, 15, v%d' % vT1)
    e('v_lshl_add_u32 v10, v20, 8, v23')
    e('v_and_b32 v20, 7, v%d' % vT1)
    e('v_lshlrev_b32 v21, 1, v22')
    e('v_lshl_add_u32 v11, v20, 4, v21')
    e('s_mov_b32 s%d, 0x%08x' % (sC, f32(CEXP)))
    e('s_mov_b32 s%d, 0x05040100' % sPLO)
    e('s_mov_b32 s%d, 0x07060302' % sPHI)
    e('s_mov_b32 s%d, 4096' % s4096)
    e('s_mov_b32 s%d, 0x%08x' % (sBIG, f32(BIG)))
    e('s_mov_b32 s%d, 0xaaaaaaaa' % sODD); e('s_mov_b32 s%d, 0xaaaaaaaa' % (sODD + 1))
    e('s_lshl_b32 s%d, s2, 19' % sT)
    e('s_lshl_b32 s%d, s%d, 12' % (sT2, sWAVE))
    e('s_add_u32 s%d, s%d, s%d' % (sT, sT, sT2))
    e('s_mov_b32 s%d, 0' % sOFFK)
    e('s_mov_b32 s%d, 0' % sOFFV)
    e('s_waitcnt lgkmcnt(0)')
    def srd(d, p, off_sgpr, nrec):
        e('s_add_u32 s%d, s%d, s%d' % (d, sPTR + 2 * p, off_sgpr))
        e('s_addc_u32 s%d, s%d, 0' % (d + 1, sPTR + 2 * p + 1))
        e('s_mov_b32 s%d, %d' % (d + 2, nrec))
        e('s_mov_b32 s%d, 0x00020000' % (d + 3))
    STEP = 32768
    srd(sK, 1, sT, 524288 - 28672)
    EARLY = int(opts.get('early', 1))
    free = list(slots); unit_slot = {}
    kvo = lambda s: vKOFF1 if (s & 1) else vKOFF
    kio = lambda s: 128 * (s >> 1)
    NU = 33
    def issue_unit(j):
        sl = free.pop(0); unit_slot[j] = sl
        if j < 16:
            for s in range(4):
                g.load('buffer_load_dwordx4 v[%d:%d], v%d, s[%d:%d], s%d offen offset:%d%s' %
                       (sl + 4 * s, sl + 4 * s + 3, kvo(s), sK, sK + 3, sOFFK, kio(s), FLK), ('u', j))
            e('s_add_u32 s%d, s%d, %d' % (sOFFK, sOFFK, STEP))
        elif j == 16:
            for i in range(2):
                g.load('buffer_load_dwordx4 v[%d:%d], v%d, s[%d:%d], 0 offen offset:%d' %
                       (sl + 4 * i, sl + 4 * i + 3, vVOFF, sVT, sVT + 3, 1024 * i), ('u', j))
        else:
            for i in range(4):
                g.load('buffer_load_dwordx4 v[%d:%d], v%d, s[%d:%d], s%d offen offset:%d%s' %
                       (sl + 4 * i, sl + 4 * i + 3, vVOFF, sV, sV + 3, sOFFV, 1024 * i, FLV), ('u', j))
            e('s_add_u32 s%d, s%d, %d' % (sOFFV, sOFFV, STEP))
    nxt = [0]
    def fill():
        while free and nxt[0] < NU:
            issue_unit(nxt[0]); nxt[0] += 1
    if PRIO: e('s_setprio 3')
    slT = free.pop(0)
    if EARLY: fill()
    srd(sV, 2, sT, 524288 - 28672)
    e('s_lshl_b32 s%d, s2, 13' % sT)
    srd(sQ, 0, sT, 8192)
    srd(sOUT, 6, sT, 8192)
    e('s_lshl_b32 s%d, s2, 11' % sT)
    srd(sKT, 3, sT, 2048)
    srd(sVT, 4, sT, 2048)
    e('s_lshr_b32 s%d, s2, 3' % sT)
    e('s_lshl_b32 s%d, s%d, 7' % (sT, sT))
    srd(sMK, 5, sT, 128)

    c('Q loads')
    for u in range(2):
        for s in range(4):
            r = vQ + (u * 4 + s) * 4
            g.load('buffer_load_dwordx4 v[%d:%d], v10, s[%d:%d], %s offen offset:%d' %
                   (r, r + 3, sQ, sQ + 3, ('s%d' % s4096) if u else '0', 64 * s), 'q')
    c('tree K + mask loads')
    for s in range(4):
        g.load('buffer_load_dwordx4 v[%d:%d], v%d, s[%d:%d], 0 offen offset:%d' %
               (slT + 4 * s, slT + 4 * s + 3, kvo(s), sKT, sKT + 3, kio(s)), 'kt')
    g.load('buffer_load_ushort v%d, v11, s[%d:%d], 0 offen' % (vADD0, sMK, sMK + 3), 'mk')
    g.load('buffer_load_ushort v%d, v11, s[%d:%d], 0 offen offset:8' % (vADD1, sMK, sMK + 3), 'mk')
    fill()
    def mf(d, a, b, cc, k16=False):
        if k16: e('v_mfma_f32_16x16x16_bf16 v[%d:%d], v[%d:%d], v[%d:%d], %s' % (d, d + 3, a, a + 1, b, b + 1, cc))
        else: e('v_mfma_f32_16x16x32_bf16 v[%d:%d], v[%d:%d], v[%d:%d], %s' % (d, d + 3, a, a + 3, b, b + 3, cc))
    acc = lambda d: 'v[%d:%d]' % (d, d + 3)
    def qk(sl, dst, tmp):
        e('s_mov_b64 exec, s[%d:%d]' % (sODD, sODD + 1))
        for h in range(2):
            for k in range(4):
                e('v_swap_b32 v%d, v%d' % (sl + 8 * h + k, sl + 8 * h + 4 + k))
        e('s_mov_b64 exec, -1')
        e('s_nop 1')
        for u in range(2):
            for x in range(2):
                d = dst[u] if x == 0 else tmp[u]
                for h in range(2):
                    s = 2 * h + x
                    mf(d, sl + 4 * s, vQ + (u * 4 + s) * 4, '0' if h == 0 else acc(d))
    def qk_fix(dst, tmp, rs=range(4)):
        for u in range(2):
            for r in rs:
                e('v_add_f32 v%d, v%d, v%d' % (dst[u] + r, dst[u] + r, tmp[u] + (r ^ 1)))
    vTT = vS + 7 * 16
    def tree_qk():
        c('tree QK')
        g.wait(['q', 'kt', 'mk'])
        qk(slT, [vTT, vTT + 4], [vTT + 8, vTT + 12])
        free.append(slT); fill()
        c('mask term: add = (1 - mask) * (-1e9/scale) ; waves != 0 -> -inf')
        e('v_lshlrev_b32 v%d, 16, v%d' % (vADD0, vADD0))
        e('v_lshlrev_b32 v%d, 16, v%d' % (vADD1, vADD1))
        e('v_sub_f32 v%d, 1.0, v%d' % (vADD0, vADD0))
        e('v_sub_f32 v%d, 1.0, v%d' % (vADD1, vADD1))
        e('v_mul_f32 v%d, s%d, v%d' % (vADD0, sBIG, vADD0))
        e('v_mul_f32 v%d, s%d, v%d' % (vADD1, sBIG, vADD1))
        e('s_cmp_eq_u32 s%d, 0' % sWAVE)
        e('s_cbranch_scc1 L_w0')
        e('v_mov_b32 v%d, 0xff800000' % vADD0)
        e('v_mov_b32 v%d, 0xff800000' % vADD1)
        g.lab('L_w0')
        e('s_nop 4')
        qk_fix([vTT, vTT + 4], [vTT + 8, vTT + 12], range(2))
        e('v_add_f32 v%d, v%d, v%d' % (vTS + 0, vTT + 0, vADD0))
        e('v_add_f32 v%d, v%d, v%d' % (vTS + 1, vTT + 1, vADD1))
        e('v_add_f32 v%d, v%d, v%d' % (vTS + 2, vTT + 4, vADD0))
        e('v_add_f32 v%d, v%d, v%d' % (vTS + 3, vTT + 5, vADD1))

    stamp()
    g.wait(['q'])
    stamp()
    if not EARLY: tree_qk()
    c('K phase')
    for t in range(16):
        b, tau = t // 2, t % 2
        g.wait([('u', t)])
        sl = unit_slot[t]
        dst = [vS + b * 16 + u * 8 + tau * 4 for u in range(2)]
        tmp = [vTMP + (t % 2) * 8 + u * 4 for u in range(2)]
        qk(sl, dst, tmp)
        if t > 0: qk_fix(*prev)
        prev = (dst, tmp)
        free.append(sl)
        if t == 15: free.append(vQ)
        if PRIO == 1 and t == 7: e('s_setprio 2')
        if PRIO == 1 and t == 15: e('s_setprio 1')
        fill()
        if EARLY and t == 2: tree_qk()
    stamp()
    c('softmax: max')
    e('s_nop 7')
    qk_fix(*prev)
    free.append(vTMP); fill()
    for u in range(2):
        vals = [vS + b * 16 + u * 8 + k for b in range(8) for k in range(8)] + [vTS + 2 * u, vTS + 2 * u + 1]
        e('v_max_f32 v%d, v%d, v%d' % (vM[u], vals[0], vals[1]))
        for k in range(2, len(vals), 2):
            e('v_max3_f32 v%d, v%d, v%d, v%d' % (vM[u], vM[u], vals[k], vals[k + 1]))
    def xreduce(regs, op):
        tmps = [vT0, vT1]
        for sw in ('v_permlane16_swap_b32', 'v_permlane32_swap_b32'):
            for r, t in zip(regs, tmps): e('v_mov_b32 v%d, v%d' % (t, r))
            e('s_nop 1')
            for r, t in zip(regs, tmps): e('%s v%d, v%d' % (sw, r, t))
            e('s_nop 1')
            for r, t in zip(regs, tmps): e('%s v%d, v%d, v%d' % (op, r, r, t))
    xreduce(vM, 'v_max_f32')
    c('softmax: exp / sum / pack')
    vMC = [vVT, vVT + 1]; vL2 = [vVT + 2, vVT + 3]
    for u in range(2):
        e('v_mul_f32 v%d, s%d, v%d' % (vMC[u], sC, vM[u]))
        e('v_mov_b32 v%d, 0' % vL[u])
    for u in range(2):
        for k in range(2):
            r = vTS + 2 * u + k
            e('v_fma_f32 v%d, v%d, s%d, -v%d' % (r, r, sC, vMC[u]))
    for r in range(vTS, vTS + 4): e('v_exp_f32 v%d, v%d' % (r, r))
    e('s_nop 0')
    for u in range(2): e('v_add_f32 v%d, v%d, v%d' % (vL2[u], vTS + 2 * u, vTS + 2 * u + 1))
    e('v_cvt_pk_bf16_f32 v%d, v%d, v%d' % (vTS, vTS, vTS + 1))
    e('v_mov_b32 v%d, 0' % (vTS + 1))
    e('v_cvt_pk_bf16_f32 v%d, v%d, v%d' % (vTS + 2, vTS + 2, vTS + 3))
    e('v_mov_b32 v%d, 0' % (vTS + 3))
    for b in range(8):
        for u in range(2):
            base = vS + b * 16 + u * 8
            for k in range(8): e('v_fma_f32 v%d, v%d, s%d, -v%d' % (base + k, base + k, sC, vMC[u]))
            for k in range(8): e('v_exp_f32 v%d, v%d' % (base + k, base + k))
            for k in range(0, 8, 2):
                e('v_add_f32 v%d, v%d, v%d' % (vL[u], vL[u], base + k))
                e('v_add_f32 v%d, v%d, v%d' % (vL2[u], vL2[u], base + k + 1))
            for k in range(4):
                e('v_cvt_pk_bf16_f32 v%d, v%d, v%d' % (vP + b * 8 + u * 4 + k, base + 2 * k, base + 2 * k + 1))
    for u in range(2): e('v_add_f32 v%d, v%d, v%d' % (vL[u], vL[u], vL2[u]))
    xreduce(vL, 'v_add_f32')
    c('LDS / output addresses; publish (m,l)')
    a0, a1, a2 = vVT, vVT + 1, vVT + 2
    e('v_lshrrev_b32 v%d, 4, v%d' % (a0, vVOFF))
    e('v_and_b32 v%d, 15, v%d' % (a1, a0))
    e('v_lshrrev_b32 v%d, 4, v%d' % (a2, a0))
    e('v_mul_u32_u24 v%d, %d, v%d' % (vWA, ROW, a1))
    e('v_lshl_add_u32 v%d, v%d, 7, v%d' % (vWA, a2, vWA))
    e('s_mul_i32 s%d, s%d, %d' % (sT, sWAVE, WSZ))
    e('v_add_u32 v%d, s%d, v%d' % (vWA, sT, vWA))
    e('s_lshl_b32 s%d, s%d, 8' % (sT, sWAVE))
    e('s_add_u32 s%d, s%d, %d' % (sT, sT, MLB))
    e('v_lshlrev_b32 v%d, 3, v%d' % (vMLA, a1))
    e('v_add_u32 v%d, s%d, v%d' % (vMLA, sT, vMLA))
    for u in range(2):
        e('ds_write_b64 v%d, v[%d:%d] offset:%d' % (vMLA, vM[u], vL[u], u * 128))
    e('v_lshrrev_b32 v%d, 4, v0' % a0)
    e('v_and_b32 v%d, 15, v0' % a1)
    e('v_mul_u32_u24 v%d, %d, v%d' % (vRA, ROW, a0))
    e('v_lshl_add_u32 v%d, v%d, 5, v%d' % (vRA, a1, vRA))
    e('v_add_u32 v%d, %d, v%d' % (vRB, 4 * WSZ, vRA))
    e('v_lshlrev_b32 v%d, 3, v%d' % (vRM, a0))
    e('v_add_u32 v%d, %d, v%d' % (vRM, MLB, vRM))
    e('v_lshlrev_b32 v%d, 8, v%d' % (vOA, a0))
    e('v_lshrrev_b32 v%d, 2, v%d' % (a2, a1))
    e('v_lshl_add_u32 v%d, v%d, 6, v%d' % (vOA, a2, vOA))
    e('v_and_b32 v%d, 3, v%d' % (a2, a1))
    e('v_lshl_add_u32 v%d, v%d, 2, v%d' % (vOA, a2, vOA))
    stamp()
    c('tree PV (initialises O)')
    g.wait([('u', 16)])
    sa = unit_slot[16]
    for cc in range(4):
        tb = vVT + (cc % 2) * 8
        e('v_perm_b32 v%d, v%d, v%d, s%d' % (tb, sa + 4 + cc, sa + cc, sPLO))
        e('v_mov_b32 v%d, 0' % (tb + 1))
        e('v_perm_b32 v%d, v%d, v%d, s%d' % (tb + 2, sa + 4 + cc, sa + cc, sPHI))
        e('v_mov_b32 v%d, 0' % (tb + 3))
        e('s_nop 1')
        for h in range(2):
            for u in range(2):
                mf(vO + ((2 * cc + h) * 2 + u) * 4, tb + 2 * h, vTS + 2 * u, '0', k16=True)
    free.append(sa); fill()
    c('V phase')
    def owrite(cc):
        for h in range(2):
            for u in range(2):
                j = 2 * cc + h; d = vO + (j * 2 + u) * 4
                e('ds_write_b128 v%d, v[%d:%d] offset:%d' % (vWA, d, d + 3, u * 16 * ROW + j * 16))
    for b in range(8):
        g.wait([('u', 17 + 2 * b), ('u', 18 + 2 * b)])
        sa, sb = unit_slot[17 + 2 * b], unit_slot[18 + 2 * b]
        rows = [sa + 4 * i for i in range(4)] + [sb + 4 * i for i in range(4)]
        for cc in range(4):
            tb = vVT + (cc % 2) * 8
            for p in range(4):
                e('v_perm_b32 v%d, v%d, v%d, s%d' % (tb + p, rows[2 * p + 1] + cc, rows[2 * p] + cc, sPLO))
            for p in range(4):
                e('v_perm_b32 v%d, v%d, v%d, s%d' % (tb + 4 + p, rows[2 * p + 1] + cc, rows[2 * p] + cc, sPHI))
            if b == 7 and cc > 0: owrite(cc - 1)
            for h in range(2):
                for u in range(2):
                    d = vO + ((2 * cc + h) * 2 + u) * 4
                    mf(d, tb + 4 * h, vP + b * 8 + u * 4, acc(d))
        free.append(sa); free.append(sb)
        if PRIO == 1 and b == 3: e('s_setprio 0')
        if GROW and b % 2 == 1: free.append(vP + (b - 1) * 8)
        fill()
    stamp()
    c('combine through LDS')
    e('s_nop 7')
    owrite(3)
    e('s_waitcnt lgkmcnt(0)')
    stamp()
    e('s_barrier')
    stamp()
    vR = 16; vX = 32; vF = vRING; vMM = vRING + 8; vLL = vRING + 9; vY = vRING + 16
    def rdp(w):
        base = vRA if w < 4 else vRB; off = (w % 4) * WSZ
        e('ds_read_b128 v[%d:%d], v%d offset:%d' % (vX + 8 * w, vX + 8 * w + 3, base, off))
        e('ds_read_b128 v[%d:%d], v%d offset:%d' % (vX + 8 * w + 4, vX + 8 * w + 7, base, off + 16))
    for w in range(NW): e('ds_read_b64 v[%d:%d], v%d offset:%d' % (vR + 2 * w, vR + 2 * w + 1, vRM, w * 256))
    for w in range(3): rdp(w)
    e('s_waitcnt lgkmcnt(6)')
    for w in range(3, 7): rdp(w)
    e('v_max_f32 v%d, v%d, v%d' % (vMM, vR, vR + 2))
    for w in range(2, NW, 2): e('v_max3_f32 v%d, v%d, v%d, v%d' % (vMM, vMM, vR + 2 * w, vR + 2 * w + 2))
    e('v_mul_f32 v%d, s%d, v%d' % (vMM, sC, vMM))
    for w in range(NW): e('v_fma_f32 v%d, v%d, s%d, -v%d' % (vF + w, vR + 2 * w, sC, vMM))
    for w in range(NW): e('v_exp_f32 v%d, v%d' % (vF + w, vF + w))
    e('s_nop 0')
    e('v_mul_f32 v%d, v%d, v%d' % (vLL, vF, vR + 1))
    for w in range(1, NW): e('v_fma_f32 v%d, v%d, v%d, v%d' % (vLL, vF + w, vR + 2 * w + 1, vLL))
    e('v_rcp_f32 v%d, v%d' % (vLL, vLL))
    e('s_waitcnt lgkmcnt(8)')
    rdp(7)
    def pk(w, k):
        f = vF + (w & ~1)
        sel = 'op_sel:[0,1,0] op_sel_hi:[1,1,1]' if (w & 1) else 'op_sel_hi:[1,0,1]'
        if w == 0:
            e('v_pk_mul_f32 v[%d:%d], v[%d:%d], v[%d:%d] op_sel_hi:[1,0]' % (vY + k, vY + k + 1, vX + k, vX + k + 1, f, f + 1))
        else:
            e('v_pk_fma_f32 v[%d:%d], v[%d:%d], v[%d:%d], v[%d:%d] %s' % (vY + k, vY + k + 1, vX + 8 * w + k, vX + 8 * w + k + 1, f, f + 1, vY + k, vY + k + 1, sel))
    for w in range(NW):
        if w >= 3: e('s_waitcnt lgkmcnt(%d)' % (2 * (7 - w)))
        for k in range(0, 8, 2): pk(w, k)
    for k in range(8): e('v_mul_f32 v%d, v%d, v%d' % (vY + k, vY + k, vLL))
    for r in range(4): e('v_cvt_pk_bf16_f32 v%d, v%d, v%d' % (vY + 8 + r, vY + r, vY + 4 + r))
    if int(opts.get('x4', 1)):
        D = vY + 8
        e('s_mov_b32 s%d, 0xcccccccc' % sT); e('s_mov_b32 s%d, 0xcccccccc' % sT2)
        for (msk, qp, prs) in (('s[%d:%d]' % (sODD, sODD + 1), '[1,0,3,2]', ((0, 1), (2, 3))), ('s[%d:%d]' % (sT, sT2), '[2,3,0,1]', ((0, 2), (1, 3)))):
            e('s_mov_b64 exec, %s' % msk)
            for x, y in prs: e('v_swap_b32 v%d, v%d' % (D + x, D + y))
            e('s_mov_b64 exec, -1')
            e('s_nop 1')
            for x, y in prs: e('v_mov_b32_dpp v%d, v%d quad_perm:%s row_mask:0xf bank_mask:0xf' % (D + y, D + y, qp))
            e('s_mov_b64 exec, %s' % msk)
            for x, y in prs: e('v_swap_b32 v%d, v%d' % (D + x, D + y))
        e('s_mov_b64 exec, -1')
        e('v_lshlrev_b32 v%d, 4, v0' % vOA)
        e('buffer_store_dwordx4 v[%d:%d], v%d, s[%d:%d], 0 offen%s' % (D, D + 3, vOA, sOUT, sOUT + 3, (' ' + opts.get('fs', '')).rstrip()))
    else:
        for r in range(4):
            e('buffer_store_dword v%d, v%d, s[%d:%d], 0 offen offset:%d' % (vY + 8 + r, vOA, sOUT, sOUT + 3, 16 * r))
    if STAMP:
        e('s_waitcnt vmcnt(0)')
        stamp()
        e('s_load_dwordx2 s[36:37], s[0:1], 64')
        e('s_lshl_b32 s%d, s2, 3' % sT); e('s_add_u32 s%d, s%d, s%d' % (sT, sT, sWAVE)); e('s_lshl_b32 s%d, s%d, 6' % (sT, sT))
        e('s_waitcnt lgkmcnt(0)')
        e('s_add_u32 s36, s36, s%d' % sT); e('s_addc_u32 s37, s37, 0'); e('s_mov_b32 s38, 64'); e('s_mov_b32 s39, 0x00020000')
        e('v_mov_b32 v1, 0')
        for k in range(nst[0]):
            e('v_mov_b32 v2, s%d' % (64 + 2 * k))
            e('buffer_store_dword v2, v1, s[36:39], 0 offen offset:%d' % (4 * k)); e('s_nop 1')
    g.lab('L_end')
    e('s_endpgm')
    lds = MLB + NW * 256
    out = HDR + '; @launch grid=(256,1,1) block=(512,1,1) lds=%d\n' % lds
    out += '.amdgcn_target "amdgcn-amd-amdhsa--gfx950"\n.text\n.globl %s_kernel\n.p2align 8\n.type %s_kernel,@function\n%s_kernel:\n' % (NAME, NAME, NAME)
    out += '\n'.join(g.l) + '\n'
    out += '''.section .rodata,"a"
.p2align 6
.amdhsa_kernel %s_kernel
  .amdhsa_next_free_vgpr 256
  .amdhsa_next_free_sgpr %d
  .amdhsa_accum_offset 256
  .amdhsa_group_segment_fixed_size 0
  .amdhsa_kernarg_size 72
  .amdhsa_user_sgpr_count 2
  .amdhsa_user_sgpr_kernarg_segment_ptr 1
  .amdhsa_system_sgpr_workgroup_id_x 1
.end_amdhsa_kernel
''' % (NAME, 96 if STAMP else 64)
    return out

if __name__ == '__main__':
    path = sys.argv[1]
    opts = dict(a.split('=') for a in sys.argv[2:])
    opts = {k: v.replace('+', ' ') for k, v in opts.items()}
    open(path, 'w').write(gen(opts))
```

```python
import sys, struct, math
NAME = "standalone__tree_speculative_verify_tree_attention_over_candidate_token_tree__sampling"
HDR = open('cdna_kernels/%s.s.ref' % NAME).read().split('; @launch')[0]
def f32(x): return struct.unpack('<I', struct.pack('<f', x))[0]

class G:
    def __init__(s): s.l = []; s.vm = []
    def e(s, t): s.l.append('    ' + t)
    def c(s, t): s.l.append('    ; ' + t)
    def lab(s, t): s.l.append(t + ':')
    def load(s, t, tag): s.e(t); s.vm.append(tag)
    def wait(s, tags):
        idx = [i for i, t in enumerate(s.vm) if t in tags]
        if not idx: return
        last = max(idx)
        s.e('s_waitcnt vmcnt(%d)' % (len(s.vm) - 1 - last))
        s.vm = s.vm[last + 1:]

def gen(opts):
    NW = 8
    FLK = (' ' + opts.get('fk', '')).rstrip(); FLV = (' ' + opts.get('fv', 'nt')).rstrip()
    PRIO = int(opts.get('prio', 0)); STAMP = int(opts.get('stamp', 0)); GROW = int(opts.get('grow', 1))
    g = G(); e, c = g.e, g.c
    vKOFF = 1; vVOFF = 2; vADD0 = 3; vADD1 = 4; vKOFF1 = 5
    vTS = 6
    vM = [10, 12]; vL = [11, 13]
    vT0 = 14; vT1 = 15
    vQ = 16; vVT = 32; vS = 48; vRING = 176
    slots = [vRING + 16 * i for i in range(4)]
    vTMP = vRING + 64
    vP = vS; vO = vS + 64
    vWA = 1; vMLA = 5; vRA = 3; vRB = 4; vRM = 14; vOA = 15
    sWAVE = 3
    sQ, sK, sV, sKT, sVT, sMK, sOUT = 8, 12, 16, 20, 24, 28, 32
    sPTR = 36
    sC = 52; sPLO = 53; sPHI = 54; s4096 = 55; sOFFK = 56; sOFFV = 57; sT = 58; sT2 = 59; sBIG = 60; sODD = 62
    SCALE = 128 ** -0.5; CEXP = SCALE * math.log2(math.e); BIG = -1e9 / SCALE
    ROW = 528; WSZ = 32 * ROW; MLB = NW * WSZ
    nst = [0]
    def stamp():
        if not STAMP: return
        e('s_memrealtime s[%d:%d]' % (64 + 2 * nst[0], 65 + 2 * nst[0])); e('s_waitcnt lgkmcnt(0)'); nst[0] += 1

    e('s_cmp_ge_u32 s2, 256')
    e('s_cbranch_scc1 L_end')
    stamp()
    e('s_load_dwordx16 s[%d:%d], s[0:1], 0' % (sPTR, sPTR + 15))
    e('v_lshrrev_b32 v%d, 6, v0' % vT0)
    e('v_and_b32 v%d, 63, v0' % vT1)
    e('v_readfirstlane_b32 s%d, v%d' % (sWAVE, vT0))
    e('v_lshlrev_b32 v%d, 4, v%d' % (vVOFF, vT1))
    e('v_lshrrev_b32 v22, 4, v%d' % vT1)
    e('v_lshlrev_b32 v23, 4, v22')
    c('K voffsets: slot = 2a+l ; key row = 4*(slot&3) + (slot>>2) ; + ((mu^l)*64) + g*16')
    for ll, dst in ((0, vKOFF), (1, vKOFF1)):
        e('v_and_b32 v20, 14, v%d' % vT1); e('v_or_b32 v20, %d, v20' % ll)
        e('v_and_b32 v21, 3, v20'); e('v_lshlrev_b32 v21, 10, v21'); e('v_bfe_u32 v20, v20, 2, 2'); e('v_lshl_add_u32 v21, v20, 8, v21')
        e('v_and_b32 v20, 1, v%d' % vT1); e('v_xor_b32 v20, %d, v20' % ll); e('v_lshl_add_u32 v21, v20, 6, v21')
        e('v_add_u32 v%d, v21, v23' % dst)
    c('Q voffset (v10) = n*256 + g*16 ; mask voffset (v11) = (n&7)*16 + g*2')
    e('v_and_b32 v20, 15, v%d' % vT1)
    e('v_lshl_add_u32 v10, v20, 8, v23')
    e('v_and_b32 v20, 7, v%d' % vT1)
    e('v_lshlrev_b32 v21, 1, v22')
    e('v_lshl_add_u32 v11, v20, 4, v21')
    e('s_mov_b32 s%d, 0x%08x' % (sC, f32(CEXP)))
    e('s_mov_b32 s%d, 0x05040100' % sPLO)
    e('s_mov_b32 s%d, 0x07060302' % sPHI)
    e('s_mov_b32 s%d, 4096' % s4096)
    e('s_mov_b32 s%d, 0x%08x' % (sBIG, f32(BIG)))
    e('s_mov_b32 s%d, 0xaaaaaaaa' % sODD); e('s_mov_b32 s%d, 0xaaaaaaaa' % (sODD + 1))
    e('s_lshl_b32 s%d, s2, 19' % sT)
    e('s_lshl_b32 s%d, s%d, 12' % (sT2, sWAVE))
    e('s_add_u32 s%d, s%d, s%d' % (sT, sT, sT2))
    ROT = opts.get('rot', '')
    if ROT:
        sh, mul = (int(x) for x in ROT.split(','))
        e('s_lshr_b32 s%d, s2, %d' % (sOFFK, sh))
        e('s_mul_i32 s%d, s%d, %d' % (sOFFK, sOFFK, mul))
        e('s_and_b32 s%d, s%d, 15' % (sOFFK, sOFFK))
        e('s_lshl_b32 s%d, s%d, 15' % (sOFFK, sOFFK))
        e('s_mov_b32 s%d, s%d' % (sOFFV, sOFFK))
    else:
        e('s_mov_b32 s%d, 0' % sOFFK)
        e('s_mov_b32 s%d, 0' % sOFFV)
    e('s_waitcnt lgkmcnt(0)')
    def srd(d, p, off_sgpr, nrec):
        e('s_add_u32 s%d, s%d, s%d' % (d, sPTR + 2 * p, off_sgpr))
        e('s_addc_u32 s%d, s%d, 0' % (d + 1, sPTR + 2 * p + 1))
        e('s_mov_b32 s%d, %d' % (d + 2, nrec))
        e('s_mov_b32 s%d, 0x00020000' % (d + 3))
    STEP = 32768
    srd(sK, 1, sT, 524288 - 28672)
    EARLY = int(opts.get('early', 0))
    free = list(slots); unit_slot = {}
    kvo = lambda s: vKOFF1 if (s & 1) else vKOFF
    kio = lambda s: 128 * (s >> 1)
    NU = 33
    def issue_unit(j):
        sl = free.pop(0); unit_slot[j] = sl
        if j < 16:
            for s in range(4):
                g.load('buffer_load_dwordx4 v[%d:%d], v%d, s[%d:%d], s%d offen offset:%d%s' %
                       (sl + 4 * s, sl + 4 * s + 3, kvo(s), sK, sK + 3, sOFFK, kio(s), FLK), ('u', j))
            e('s_add_u32 s%d, s%d, %d' % (sOFFK, sOFFK, STEP))
            if ROT: e('s_and_b32 s%d, s%d, 0x7ffff' % (sOFFK, sOFFK))
        elif j == 16:
            for i in range(2):
                g.load('buffer_load_dwordx4 v[%d:%d], v%d, s[%d:%d], 0 offen offset:%d' %
                       (sl + 4 * i, sl + 4 * i + 3, vVOFF, sVT, sVT + 3, 1024 * i), ('u', j))
        else:
            for i in range(4):
                g.load('buffer_load_dwordx4 v[%d:%d], v%d, s[%d:%d], s%d offen offset:%d%s' %
                       (sl + 4 * i, sl + 4 * i + 3, vVOFF, sV, sV + 3, sOFFV, 1024 * i, FLV), ('u', j))
            e('s_add_u32 s%d, s%d, %d' % (sOFFV, sOFFV, STEP))
            if ROT: e('s_and_b32 s%d, s%d, 0x7ffff' % (sOFFV, sOFFV))
    nxt = [0]
    def fill():
        while free and nxt[0] < NU:
            issue_unit(nxt[0]); nxt[0] += 1
    if PRIO: e('s_setprio 3')
    slT = free.pop(0)
    if EARLY: fill()
    srd(sV, 2, sT, 524288 - 28672)
    e('s_lshl_b32 s%d, s2, 13' % sT)
    srd(sQ, 0, sT, 8192)
    srd(sOUT, 6, sT, 8192)
    e('s_lshl_b32 s%d, s2, 11' % sT)
    srd(sKT, 3, sT, 2048)
    srd(sVT, 4, sT, 2048)
    e('s_lshr_b32 s%d, s2, 3' % sT)
    e('s_lshl_b32 s%d, s%d, 7' % (sT, sT))
    srd(sMK, 5, sT, 128)

    c('Q loads')
    for u in range(2):
        for s in range(4):
            r = vQ + (u * 4 + s) * 4
            g.load('buffer_load_dwordx4 v[%d:%d], v10, s[%d:%d], %s offen offset:%d' %
                   (r, r + 3, sQ, sQ + 3, ('s%d' % s4096) if u else '0', 64 * s), 'q')
    c('tree K + mask loads')
    for s in range(4):
        g.load('buffer_load_dwordx4 v[%d:%d], v%d, s[%d:%d], 0 offen offset:%d' %
               (slT + 4 * s, slT + 4 * s + 3, kvo(s), sKT, sKT + 3, kio(s)), 'kt')
    g.load('buffer_load_ushort v%d, v11, s[%d:%d], 0 offen' % (vADD0, sMK, sMK + 3), 'mk')
    g.load('buffer_load_ushort v%d, v11, s[%d:%d], 0 offen offset:8' % (vADD1, sMK, sMK + 3), 'mk')
    fill()
    def mf(d, a, b, cc, k16=False):
        if k16: e('v_mfma_f32_16x16x16_bf16 v[%d:%d], v[%d:%d], v[%d:%d], %s' % (d, d + 3, a, a + 1, b, b + 1, cc))
        else: e('v_mfma_f32_16x16x32_bf16 v[%d:%d], v[%d:%d], v[%d:%d], %s' % (d, d + 3, a, a + 3, b, b + 3, cc))
    acc = lambda d: 'v[%d:%d]' % (d, d + 3)
    def qk(sl, dst, tmp):
        e('s_mov_b64 exec, s[%d:%d]' % (sODD, sODD + 1))
        for h in range(2):
            for k in range(4):
                e('v_swap_b32 v%d, v%d' % (sl + 8 * h + k, sl + 8 * h + 4 + k))
        e('s_mov_b64 exec, -1')
        e('s_nop 1')
        for u in range(2):
            for x in range(2):
                d = dst[u] if x == 0 else tmp[u]
                for h in range(2):
                    s = 2 * h + x
                    mf(d, sl + 4 * s, vQ + (u * 4 + s) * 4, '0' if h == 0 else acc(d))
    def qk_fix(dst, tmp, rs=range(4)):
        for u in range(2):
            for r in rs:
                e('v_add_f32 v%d, v%d, v%d' % (dst[u] + r, dst[u] + r, tmp[u] + (r ^ 1)))
    vTT = vS + 7 * 16
    def tree_qk():
        c('tree QK')
        g.wait(['q', 'kt', 'mk'])
        qk(slT, [vTT, vTT + 4], [vTT + 8, vTT + 12])
        free.append(slT); fill()
        c('mask term: add = (1 - mask) * (-1e9/scale) ; waves != 0 -> -inf')
        e('v_lshlrev_b32 v%d, 16, v%d' % (vADD0, vADD0))
        e('v_lshlrev_b32 v%d, 16, v%d' % (vADD1, vADD1))
        e('v_sub_f32 v%d, 1.0, v%d' % (vADD0, vADD0))
        e('v_sub_f32 v%d, 1.0, v%d' % (vADD1, vADD1))
        e('v_mul_f32 v%d, s%d, v%d' % (vADD0, sBIG, vADD0))
        e('v_mul_f32 v%d, s%d, v%d' % (vADD1, sBIG, vADD1))
        e('s_cmp_eq_u32 s%d, 0' % sWAVE)
        e('s_cbranch_scc1 L_w0')
        e('v_mov_b32 v%d, 0xff800000' % vADD0)
        e('v_mov_b32 v%d, 0xff800000' % vADD1)
        g.lab('L_w0')
        e('s_nop 4')
        qk_fix([vTT, vTT + 4], [vTT + 8, vTT + 12], range(2))
        e('v_add_f32 v%d, v%d, v%d' % (vTS + 0, vTT + 0, vADD0))
        e('v_add_f32 v%d, v%d, v%d' % (vTS + 1, vTT + 1, vADD1))
        e('v_add_f32 v%d, v%d, v%d' % (vTS + 2, vTT + 4, vADD0))
        e('v_add_f32 v%d, v%d, v%d' % (vTS + 3, vTT + 5, vADD1))

    stamp()
    g.wait(['q'])
    stamp()
    if not EARLY: tree_qk()
    c('K phase')
    for t in range(16):
        b, tau = t // 2, t % 2
        g.wait([('u', t)])
        sl = unit_slot[t]
        dst = [vS + b * 16 + u * 8 + tau * 4 for u in range(2)]
        tmp = [vTMP + (t % 2) * 8 + u * 4 for u in range(2)]
        qk(sl, dst, tmp)
        if t > 0: qk_fix(*prev)
        prev = (dst, tmp)
        free.append(sl)
        if t == 15: free.append(vQ)
        if PRIO == 1 and t == 7: e('s_setprio 2')
        if PRIO == 1 and t == 15: e('s_setprio 1')
        fill()
        if EARLY and t == 2: tree_qk()
    stamp()
    c('softmax: max')
    e('s_nop 7')
    qk_fix(*prev)
    free.append(vTMP); fill()
    for u in range(2):
        vals = [vS + b * 16 + u * 8 + k for b in range(8) for k in range(8)] + [vTS + 2 * u, vTS + 2 * u + 1]
        e('v_max_f32 v%d, v%d, v%d' % (vM[u], vals[0], vals[1]))
        for k in range(2, len(vals), 2):
            e('v_max3_f32 v%d, v%d, v%d, v%d' % (vM[u], vM[u], vals[k], vals[k + 1]))
    def xreduce(regs, op):
        tmps = [vT0, vT1]
        for sw in ('v_permlane16_swap_b32', 'v_permlane32_swap_b32'):
            for r, t in zip(regs, tmps): e('v_mov_b32 v%d, v%d' % (t, r))
            e('s_nop 1')
            for r, t in zip(regs, tmps): e('%s v%d, v%d' % (sw, r, t))
            e('s_nop 1')
            for r, t in zip(regs, tmps): e('%s v%d, v%d, v%d' % (op, r, r, t))
    xreduce(vM, 'v_max_f32')
    c('softmax: exp / sum / pack')
    vMC = [vVT, vVT + 1]; vL2 = [vVT + 2, vVT + 3]
    for u in range(2):
        e('v_mul_f32 v%d, s%d, v%d' % (vMC[u], sC, vM[u]))
        e('v_mov_b32 v%d, 0' % vL[u])
    for u in range(2):
        for k in range(2):
            r = vTS + 2 * u + k
            e('v_fma_f32 v%d, v%d, s%d, -v%d' % (r, r, sC, vMC[u]))
    for r in range(vTS, vTS + 4): e('v_exp_f32 v%d, v%d' % (r, r))
    e('s_nop 0')
    for u in range(2): e('v_add_f32 v%d, v%d, v%d' % (vL2[u], vTS + 2 * u, vTS + 2 * u + 1))
    e('v_cvt_pk_bf16_f32 v%d, v%d, v%d' % (vTS, vTS, vTS + 1))
    e('v_mov_b32 v%d, 0' % (vTS + 1))
    e('v_cvt_pk_bf16_f32 v%d, v%d, v%d' % (vTS + 2, vTS + 2, vTS + 3))
    e('v_mov_b32 v%d, 0' % (vTS + 3))
    for b in range(8):
        for u in range(2):
            base = vS + b * 16 + u * 8
            for k in range(8): e('v_fma_f32 v%d, v%d, s%d, -v%d' % (base + k, base + k, sC, vMC[u]))
            for k in range(8): e('v_exp_f32 v%d, v%d' % (base + k, base + k))
            for k in range(0, 8, 2):
                e('v_add_f32 v%d, v%d, v%d' % (vL[u], vL[u], base + k))
                e('v_add_f32 v%d, v%d, v%d' % (vL2[u], vL2[u], base + k + 1))
            for k in range(4):
                e('v_cvt_pk_bf16_f32 v%d, v%d, v%d' % (vP + b * 8 + u * 4 + k, base + 2 * k, base + 2 * k + 1))
    for u in range(2): e('v_add_f32 v%d, v%d, v%d' % (vL[u], vL[u], vL2[u]))
    xreduce(vL, 'v_add_f32')
    c('LDS / output addresses; publish (m,l)')
    a0, a1, a2 = vVT, vVT + 1, vVT + 2
    e('v_lshrrev_b32 v%d, 4, v%d' % (a0, vVOFF))
    e('v_and_b32 v%d, 15, v%d' % (a1, a0))
    e('v_lshrrev_b32 v%d, 4, v%d' % (a2, a0))
    e('v_mul_u32_u24 v%d, %d, v%d' % (vWA, ROW, a1))
    e('v_lshl_add_u32 v%d, v%d, 7, v%d' % (vWA, a2, vWA))
    e('s_mul_i32 s%d, s%d, %d' % (sT, sWAVE, WSZ))
    e('v_add_u32 v%d, s%d, v%d' % (vWA, sT, vWA))
    e('s_lshl_b32 s%d, s%d, 8' % (sT, sWAVE))
    e('s_add_u32 s%d, s%d, %d' % (sT, sT, MLB))
    e('v_lshlrev_b32 v%d, 3, v%d' % (vMLA, a1))
    e('v_add_u32 v%d, s%d, v%d' % (vMLA, sT, vMLA))
    for u in range(2):
        e('ds_write_b64 v%d, v[%d:%d] offset:%d' % (vMLA, vM[u], vL[u], u * 128))
    e('v_lshrrev_b32 v%d, 4, v0' % a0)
    e('v_and_b32 v%d, 15, v0' % a1)
    e('v_mul_u32_u24 v%d, %d, v%d' % (vRA, ROW, a0))
    e('v_lshl_add_u32 v%d, v%d, 5, v%d' % (vRA, a1, vRA))
    e('v_add_u32 v%d, %d, v%d' % (vRB, 4 * WSZ, vRA))
    e('v_lshlrev_b32 v%d, 3, v%d' % (vRM, a0))
    e('v_add_u32 v%d, %d, v%d' % (vRM, MLB, vRM))
    e('v_lshlrev_b32 v%d, 8, v%d' % (vOA, a0))
    e('v_lshrrev_b32 v%d, 2, v%d' % (a2, a1))
    e('v_lshl_add_u32 v%d, v%d, 6, v%d' % (vOA, a2, vOA))
    e('v_and_b32 v%d, 3, v%d' % (a2, a1))
    e('v_lshl_add_u32 v%d, v%d, 2, v%d' % (vOA, a2, vOA))
    stamp()
    c('tree PV (initialises O)')
    g.wait([('u', 16)])
    sa = unit_slot[16]
    for cc in range(4):
        tb = vVT + (cc % 2) * 8
        e('v_perm_b32 v%d, v%d, v%d, s%d' % (tb, sa + 4 + cc, sa + cc, sPLO))
        e('v_mov_b32 v%d, 0' % (tb + 1))
        e('v_perm_b32 v%d, v%d, v%d, s%d' % (tb + 2, sa + 4 + cc, sa + cc, sPHI))
        e('v_mov_b32 v%d, 0' % (tb + 3))
        e('s_nop 1')
        for h in range(2):
            for u in range(2):
                mf(vO + ((2 * cc + h) * 2 + u) * 4, tb + 2 * h, vTS + 2 * u, '0', k16=True)
    free.append(sa); fill()
    c('V phase')
    def owrite(cc):
        for h in range(2):
            for u in range(2):
                j = 2 * cc + h; d = vO + (j * 2 + u) * 4
                e('ds_write_b128 v%d, v[%d:%d] offset:%d' % (vWA, d, d + 3, u * 16 * ROW + j * 16))
    for b in range(8):
        g.wait([('u', 17 + 2 * b), ('u', 18 + 2 * b)])
        sa, sb = unit_slot[17 + 2 * b], unit_slot[18 + 2 * b]
        rows = [sa + 4 * i for i in range(4)] + [sb + 4 * i for i in range(4)]
        for cc in range(4):
            tb = vVT + (cc % 2) * 8
            for p in range(4):
                e('v_perm_b32 v%d, v%d, v%d, s%d' % (tb + p, rows[2 * p + 1] + cc, rows[2 * p] + cc, sPLO))
            for p in range(4):
                e('v_perm_b32 v%d, v%d, v%d, s%d' % (tb + 4 + p, rows[2 * p + 1] + cc, rows[2 * p] + cc, sPHI))
            if b == 7 and cc > 0: owrite(cc - 1)
            for h in range(2):
                for u in range(2):
                    d = vO + ((2 * cc + h) * 2 + u) * 4
                    mf(d, tb + 4 * h, vP + b * 8 + u * 4, acc(d))
        free.append(sa); free.append(sb)
        if PRIO == 1 and b == 3: e('s_setprio 0')
        if GROW and b % 2 == 1: free.append(vP + (b - 1) * 8)
        fill()
    stamp()
    c('combine through LDS')
    e('s_nop 7')
    owrite(3)
    e('s_waitcnt lgkmcnt(0)')
    stamp()
    e('s_barrier')
    stamp()
    vR = 16; vX = 32; vF = vRING; vMM = vRING + 8; vLL = vRING + 9; vY = vRING + 16
    def rdp(w):
        base = vRA if w < 4 else vRB; off = (w % 4) * WSZ
        e('ds_read_b128 v[%d:%d], v%d offset:%d' % (vX + 8 * w, vX + 8 * w + 3, base, off))
        e('ds_read_b128 v[%d:%d], v%d offset:%d' % (vX + 8 * w + 4, vX + 8 * w + 7, base, off + 16))
    for w in range(NW): e('ds_read_b64 v[%d:%d], v%d offset:%d' % (vR + 2 * w, vR + 2 * w + 1, vRM, w * 256))
    for w in range(3): rdp(w)
    e('s_waitcnt lgkmcnt(6)')
    for w in range(3, 7): rdp(w)
    e('v_max_f32 v%d, v%d, v%d' % (vMM, vR, vR + 2))
    for w in range(2, NW, 2): e('v_max3_f32 v%d, v%d, v%d, v%d' % (vMM, vMM, vR + 2 * w, vR + 2 * w + 2))
    e('v_mul_f32 v%d, s%d, v%d' % (vMM, sC, vMM))
    for w in range(NW): e('v_fma_f32 v%d, v%d, s%d, -v%d' % (vF + w, vR + 2 * w, sC, vMM))
    for w in range(NW): e('v_exp_f32 v%d, v%d' % (vF + w, vF + w))
    e('s_nop 0')
    e('v_mul_f32 v%d, v%d, v%d' % (vLL, vF, vR + 1))
    for w in range(1, NW): e('v_fma_f32 v%d, v%d, v%d, v%d' % (vLL, vF + w, vR + 2 * w + 1, vLL))
    e('v_rcp_f32 v%d, v%d' % (vLL, vLL))
    e('s_waitcnt lgkmcnt(8)')
    rdp(7)
    def pk(w, k):
        f = vF + (w & ~1)
        sel = 'op_sel:[0,1,0] op_sel_hi:[1,1,1]' if (w & 1) else 'op_sel_hi:[1,0,1]'
        if w == 0:
            e('v_pk_mul_f32 v[%d:%d], v[%d:%d], v[%d:%d] op_sel_hi:[1,0]' % (vY + k, vY + k + 1, vX + k, vX + k + 1, f, f + 1))
        else:
            e('v_pk_fma_f32 v[%d:%d], v[%d:%d], v[%d:%d], v[%d:%d] %s' % (vY + k, vY + k + 1, vX + 8 * w + k, vX + 8 * w + k + 1, f, f + 1, vY + k, vY + k + 1, sel))
    for w in range(NW):
        if w >= 3: e('s_waitcnt lgkmcnt(%d)' % (2 * (7 - w)))
        for k in range(0, 8, 2): pk(w, k)
    for k in range(8): e('v_mul_f32 v%d, v%d, v%d' % (vY + k, vY + k, vLL))
    for r in range(4): e('v_cvt_pk_bf16_f32 v%d, v%d, v%d' % (vY + 8 + r, vY + r, vY + 4 + r))
    if int(opts.get('x4', 1)):
        D = vY + 8
        e('s_mov_b32 s%d, 0xcccccccc' % sT); e('s_mov_b32 s%d, 0xcccccccc' % sT2)
        for (msk, qp, prs) in (('s[%d:%d]' % (sODD, sODD + 1), '[1,0,3,2]', ((0, 1), (2, 3))), ('s[%d:%d]' % (sT, sT2), '[2,3,0,1]', ((0, 2), (1, 3)))):
            e('s_mov_b64 exec, %s' % msk)
            for x, y in prs: e('v_swap_b32 v%d, v%d' % (D + x, D + y))
            e('s_mov_b64 exec, -1')
            e('s_nop 1')
            for x, y in prs: e('v_mov_b32_dpp v%d, v%d quad_perm:%s row_mask:0xf bank_mask:0xf' % (D + y, D + y, qp))
            e('s_mov_b64 exec, %s' % msk)
            for x, y in prs: e('v_swap_b32 v%d, v%d' % (D + x, D + y))
        e('s_mov_b64 exec, -1')
        e('v_lshlrev_b32 v%d, 4, v0' % vOA)
        e('buffer_store_dwordx4 v[%d:%d], v%d, s[%d:%d], 0 offen%s' % (D, D + 3, vOA, sOUT, sOUT + 3, (' ' + opts.get('fs', '')).rstrip()))
    else:
        for r in range(4):
            e('buffer_store_dword v%d, v%d, s[%d:%d], 0 offen offset:%d' % (vY + 8 + r, vOA, sOUT, sOUT + 3, 16 * r))
    if STAMP:
        e('s_waitcnt vmcnt(0)')
        stamp()
        e('s_load_dwordx2 s[36:37], s[0:1], 64')
        e('s_lshl_b32 s%d, s2, 3' % sT); e('s_add_u32 s%d, s%d, s%d' % (sT, sT, sWAVE)); e('s_lshl_b32 s%d, s%d, 6' % (sT, sT))
        e('s_waitcnt lgkmcnt(0)')
        e('s_add_u32 s36, s36, s%d' % sT); e('s_addc_u32 s37, s37, 0'); e('s_mov_b32 s38, 64'); e('s_mov_b32 s39, 0x00020000')
        e('v_mov_b32 v1, 0')
        for k in range(nst[0]):
            e('v_mov_b32 v2, s%d' % (64 + 2 * k))
            e('buffer_store_dword v2, v1, s[36:39], 0 offen offset:%d' % (4 * k)); e('s_nop 1')
    g.lab('L_end')
    e('s_endpgm')
    lds = MLB + NW * 256
    out = HDR + '; @launch grid=(256,1,1) block=(512,1,1) lds=%d\n' % lds
    out += '.amdgcn_target "amdgcn-amd-amdhsa--gfx950"\n.text\n.globl %s_kernel\n.p2align 8\n.type %s_kernel,@function\n%s_kernel:\n' % (NAME, NAME, NAME)
    out += '\n'.join(g.l) + '\n'
    out += '''.section .rodata,"a"
.p2align 6
.amdhsa_kernel %s_kernel
  .amdhsa_next_free_vgpr 256
  .amdhsa_next_free_sgpr %d
  .amdhsa_accum_offset 256
  .amdhsa_group_segment_fixed_size 0
  .amdhsa_kernarg_size 72
  .amdhsa_user_sgpr_count 2
  .amdhsa_user_sgpr_kernarg_segment_ptr 1
  .amdhsa_system_sgpr_workgroup_id_x 1
.end_amdhsa_kernel
''' % (NAME, 96 if STAMP else 64)
    return out

if __name__ == '__main__':
    path = sys.argv[1]
    opts = dict(a.split('=') for a in sys.argv[2:])
    opts = {k: v.replace('+', ' ') for k, v in opts.items()}
    open(path, 'w').write(gen(opts))
```

```python
import sys, struct, math
NAME = "standalone__tree_speculative_verify_tree_attention_over_candidate_token_tree__sampling"
HDR = open('cdna_kernels/%s.s.ref' % NAME).read().split('; @launch')[0]
def f32(x): return struct.unpack('<I', struct.pack('<f', x))[0]

class G:
    def __init__(s): s.l = []; s.vm = []
    def e(s, t): s.l.append('    ' + t)
    def c(s, t): s.l.append('    ; ' + t)
    def lab(s, t): s.l.append(t + ':')
    def load(s, t, tag): s.e(t); s.vm.append(tag)
    def wait(s, tags):
        idx = [i for i, t in enumerate(s.vm) if t in tags]
        if not idx: return
        last = max(idx)
        s.e('s_waitcnt vmcnt(%d)' % (len(s.vm) - 1 - last))
        s.vm = s.vm[last + 1:]

def gen(opts):
    NW = 8
    FLK = (' ' + opts.get('fk', '')).rstrip(); FLV = (' ' + opts.get('fv', 'nt')).rstrip()
    PRIO = int(opts.get('prio', 0)); STAMP = int(opts.get('stamp', 0)); GROW = int(opts.get('grow', 1))
    g = G(); e, c = g.e, g.c
    vKOFF = 1; vVOFF = 2; vADD0 = 3; vADD1 = 4; vKOFF1 = 5
    vTS = 6
    vM = [10, 12]; vL = [11, 13]
    vT0 = 14; vT1 = 15
    vQ = 16; vVT = 32; vS = 48; vRING = 176
    slots = [vRING + 16 * i for i in range(4)]
    vTMP = vRING + 64
    vP = vS; vO = vS + 64
    vWA = 1; vMLA = 5; vRA = 3; vRB = 4; vRM = 14; vOA = 15
    sWAVE = 3
    sQ, sK, sV, sKT, sVT, sMK, sOUT = 8, 12, 16, 20, 24, 28, 32
    sPTR = 36
    sC = 52; sPLO = 53; sPHI = 54; s4096 = 55; sOFFK = 56; sOFFV = 57; sT = 58; sT2 = 59; sBIG = 60; sODD = 62
    SCALE = 128 ** -0.5; CEXP = SCALE * math.log2(math.e); BIG = -1e9 / SCALE
    ROW = 528; WSZ = 32 * ROW; MLB = NW * WSZ
    nst = [0]
    def stamp():
        if not STAMP: return
        e('s_memrealtime s[%d:%d]' % (64 + 2 * nst[0], 65 + 2 * nst[0])); e('s_waitcnt lgkmcnt(0)'); nst[0] += 1

    e('s_cmp_ge_u32 s2, 256')
    e('s_cbranch_scc1 L_end')
    stamp()
    e('s_load_dwordx16 s[%d:%d], s[0:1], 0' % (sPTR, sPTR + 15))
    e('v_lshrrev_b32 v%d, 6, v0' % vT0)
    e('v_and_b32 v%d, 63, v0' % vT1)
    e('v_readfirstlane_b32 s%d, v%d' % (sWAVE, vT0))
    e('v_lshlrev_b32 v%d, 4, v%d' % (vVOFF, vT1))
    e('v_lshrrev_b32 v22, 4, v%d' % vT1)
    e('v_lshlrev_b32 v23, 4, v22')
    c('K voffsets: slot = 2a+l ; key row = 4*(slot&3) + (slot>>2) ; + ((mu^l)*64) + g*16')
    for ll, dst in ((0, vKOFF), (1, vKOFF1)):
        e('v_and_b32 v20, 14, v%d' % vT1); e('v_or_b32 v20, %d, v20' % ll)
        e('v_and_b32 v21, 3, v20'); e('v_lshlrev_b32 v21, 10, v21'); e('v_bfe_u32 v20, v20, 2, 2'); e('v_lshl_add_u32 v21, v20, 8, v21')
        e('v_and_b32 v20, 1, v%d' % vT1); e('v_xor_b32 v20, %d, v20' % ll); e('v_lshl_add_u32 v21, v20, 6, v21')
        e('v_add_u32 v%d, v21, v23' % dst)
    c('Q voffset (v10) = n*256 + g*16 ; mask voffset (v11) = (n&7)*16 + g*2')
    e('v_and_b32 v20, 15, v%d' % vT1)
    e('v_lshl_add_u32 v10, v20, 8, v23')
    e('v_and_b32 v20, 7, v%d' % vT1)
    e('v_lshlrev_b32 v21, 1, v22')
    e('v_lshl_add_u32 v11, v20, 4, v21')
    e('s_mov_b32 s%d, 0x%08x' % (sC, f32(CEXP)))
    e('s_mov_b32 s%d, 0x05040100' % sPLO)
    e('s_mov_b32 s%d, 0x07060302' % sPHI)
    e('s_mov_b32 s%d, 4096' % s4096)
    e('s_mov_b32 s%d, 0x%08x' % (sBIG, f32(BIG)))
    e('s_mov_b32 s%d, 0xaaaaaaaa' % sODD); e('s_mov_b32 s%d, 0xaaaaaaaa' % (sODD + 1))
    e('s_lshl_b32 s%d, s2, 19' % sT)
    e('s_lshl_b32 s%d, s%d, 12' % (sT2, sWAVE))
    e('s_add_u32 s%d, s%d, s%d' % (sT, sT, sT2))
    ROT = opts.get('rot', '')
    if ROT:
        sh, mul = (int(x) for x in ROT.split(','))
        e('s_lshr_b32 s%d, s2, %d' % (sOFFK, sh))
        e('s_mul_i32 s%d, s%d, %d' % (sOFFK, sOFFK, mul))
        if int(opts.get('wrot', 0)):
            e('s_mul_i32 s%d, s%d, %d' % (sOFFV, sWAVE, int(opts['wrot'])))
            e('s_add_u32 s%d, s%d, s%d' % (sOFFK, sOFFK, sOFFV))
        e('s_and_b32 s%d, s%d, 15' % (sOFFK, sOFFK))
        e('s_lshl_b32 s%d, s%d, 15' % (sOFFK, sOFFK))
        e('s_mov_b32 s%d, s%d' % (sOFFV, sOFFK))
    else:
        e('s_mov_b32 s%d, 0' % sOFFK)
        e('s_mov_b32 s%d, 0' % sOFFV)
    e('s_waitcnt lgkmcnt(0)')
    def srd(d, p, off_sgpr, nrec):
        e('s_add_u32 s%d, s%d, s%d' % (d, sPTR + 2 * p, off_sgpr))
        e('s_addc_u32 s%d, s%d, 0' % (d + 1, sPTR + 2 * p + 1))
        e('s_mov_b32 s%d, %d' % (d + 2, nrec))
        e('s_mov_b32 s%d, 0x00020000' % (d + 3))
    STEP = 32768 * int(opts.get('step', 1))
    srd(sK, 1, sT, 524288 - 28672)
    EARLY = int(opts.get('early', 0))
    free = list(slots); unit_slot = {}
    kvo = lambda s: vKOFF1 if (s & 1) else vKOFF
    kio = lambda s: 128 * (s >> 1)
    NU = 33
    def issue_unit(j):
        sl = free.pop(0); unit_slot[j] = sl
        if j < 16:
            for s in range(4):
                g.load('buffer_load_dwordx4 v[%d:%d], v%d, s[%d:%d], s%d offen offset:%d%s' %
                       (sl + 4 * s, sl + 4 * s + 3, kvo(s), sK, sK + 3, sOFFK, kio(s), FLK), ('u', j))
            e('s_add_u32 s%d, s%d, %d' % (sOFFK, sOFFK, STEP))
            if ROT: e('s_and_b32 s%d, s%d, 0x7ffff' % (sOFFK, sOFFK))
        elif j == 16:
            for i in range(2):
                g.load('buffer_load_dwordx4 v[%d:%d], v%d, s[%d:%d], 0 offen offset:%d' %
                       (sl + 4 * i, sl + 4 * i + 3, vVOFF, sVT, sVT + 3, 1024 * i), ('u', j))
        else:
            for i in range(4):
                g.load('buffer_load_dwordx4 v[%d:%d], v%d, s[%d:%d], s%d offen offset:%d%s' %
                       (sl + 4 * i, sl + 4 * i + 3, vVOFF, sV, sV + 3, sOFFV, 1024 * i, FLV), ('u', j))
            e('s_add_u32 s%d, s%d, %d' % (sOFFV, sOFFV, STEP))
            if ROT: e('s_and_b32 s%d, s%d, 0x7ffff' % (sOFFV, sOFFV))
    nxt = [0]
    def fill():
        while free and nxt[0] < NU:
            issue_unit(nxt[0]); nxt[0] += 1
    if PRIO: e('s_setprio 3')
    slT = free.pop(0)
    if EARLY: fill()
    srd(sV, 2, sT, 524288 - 28672)
    e('s_lshl_b32 s%d, s2, 13' % sT)
    srd(sQ, 0, sT, 8192)
    srd(sOUT, 6, sT, 8192)
    e('s_lshl_b32 s%d, s2, 11' % sT)
    srd(sKT, 3, sT, 2048)
    srd(sVT, 4, sT, 2048)
    e('s_lshr_b32 s%d, s2, 3' % sT)
    e('s_lshl_b32 s%d, s%d, 7' % (sT, sT))
    srd(sMK, 5, sT, 128)

    c('Q loads')
    for u in range(2):
        for s in range(4):
            r = vQ + (u * 4 + s) * 4
            g.load('buffer_load_dwordx4 v[%d:%d], v10, s[%d:%d], %s offen offset:%d' %
                   (r, r + 3, sQ, sQ + 3, ('s%d' % s4096) if u else '0', 64 * s), 'q')
    c('tree K + mask loads')
    for s in range(4):
        g.load('buffer_load_dwordx4 v[%d:%d], v%d, s[%d:%d], 0 offen offset:%d' %
               (slT + 4 * s, slT + 4 * s + 3, kvo(s), sKT, sKT + 3, kio(s)), 'kt')
    g.load('buffer_load_ushort v%d, v11, s[%d:%d], 0 offen' % (vADD0, sMK, sMK + 3), 'mk')
    g.load('buffer_load_ushort v%d, v11, s[%d:%d], 0 offen offset:8' % (vADD1, sMK, sMK + 3), 'mk')
    fill()
    def mf(d, a, b, cc, k16=False):
        if k16: e('v_mfma_f32_16x16x16_bf16 v[%d:%d], v[%d:%d], v[%d:%d], %s' % (d, d + 3, a, a + 1, b, b + 1, cc))
        else: e('v_mfma_f32_16x16x32_bf16 v[%d:%d], v[%d:%d], v[%d:%d], %s' % (d, d + 3, a, a + 3, b, b + 3, cc))
    acc = lambda d: 'v[%d:%d]' % (d, d + 3)
    def qk(sl, dst, tmp):
        e('s_mov_b64 exec, s[%d:%d]' % (sODD, sODD + 1))
        for h in range(2):
            for k in range(4):
                e('v_swap_b32 v%d, v%d' % (sl + 8 * h + k, sl + 8 * h + 4 + k))
        e('s_mov_b64 exec, -1')
        e('s_nop 1')
        for u in range(2):
            for x in range(2):
                d = dst[u] if x == 0 else tmp[u]
                for h in range(2):
                    s = 2 * h + x
                    mf(d, sl + 4 * s, vQ + (u * 4 + s) * 4, '0' if h == 0 else acc(d))
    def qk_fix(dst, tmp, rs=range(4)):
        for u in range(2):
            for r in rs:
                e('v_add_f32 v%d, v%d, v%d' % (dst[u] + r, dst[u] + r, tmp[u] + (r ^ 1)))
    vTT = vS + 7 * 16
    def tree_qk():
        c('tree QK')
        g.wait(['q', 'kt', 'mk'])
        qk(slT, [vTT, vTT + 4], [vTT + 8, vTT + 12])
        free.append(slT); fill()
        c('mask term: add = (1 - mask) * (-1e9/scale) ; waves != 0 -> -inf')
        e('v_lshlrev_b32 v%d, 16, v%d' % (vADD0, vADD0))
        e('v_lshlrev_b32 v%d, 16, v%d' % (vADD1, vADD1))
        e('v_sub_f32 v%d, 1.0, v%d' % (vADD0, vADD0))
        e('v_sub_f32 v%d, 1.0, v%d' % (vADD1, vADD1))
        e('v_mul_f32 v%d, s%d, v%d' % (vADD0, sBIG, vADD0))
        e('v_mul_f32 v%d, s%d, v%d' % (vADD1, sBIG, vADD1))
        e('s_cmp_eq_u32 s%d, 0' % sWAVE)
        e('s_cbranch_scc1 L_w0')
        e('v_mov_b32 v%d, 0xff800000' % vADD0)
        e('v_mov_b32 v%d, 0xff800000' % vADD1)
        g.lab('L_w0')
        e('s_nop 4')
        qk_fix([vTT, vTT + 4], [vTT + 8, vTT + 12], range(2))
        e('v_add_f32 v%d, v%d, v%d' % (vTS + 0, vTT + 0, vADD0))
        e('v_add_f32 v%d, v%d, v%d' % (vTS + 1, vTT + 1, vADD1))
        e('v_add_f32 v%d, v%d, v%d' % (vTS + 2, vTT + 4, vADD0))
        e('v_add_f32 v%d, v%d, v%d' % (vTS + 3, vTT + 5, vADD1))

    stamp()
    g.wait(['q'])
    stamp()
    if not EARLY: tree_qk()
    c('K phase')
    for t in range(16):
        b, tau = t // 2, t % 2
        g.wait([('u', t)])
        sl = unit_slot[t]
        dst = [vS + b * 16 + u * 8 + tau * 4 for u in range(2)]
        tmp = [vTMP + (t % 2) * 8 + u * 4 for u in range(2)]
        qk(sl, dst, tmp)
        if t > 0: qk_fix(*prev)
        prev = (dst, tmp)
        free.append(sl)
        if t == 15: free.append(vQ)
        if PRIO == 1 and t == 7: e('s_setprio 2')
        if PRIO == 1 and t == 15: e('s_setprio 1')
        fill()
        if EARLY and t == 2: tree_qk()
    stamp()
    c('softmax: max')
    e('s_nop 7')
    qk_fix(*prev)
    free.append(vTMP); fill()
    for u in range(2):
        vals = [vS + b * 16 + u * 8 + k for b in range(8) for k in range(8)] + [vTS + 2 * u, vTS + 2 * u + 1]
        e('v_max_f32 v%d, v%d, v%d' % (vM[u], vals[0], vals[1]))
        for k in range(2, len(vals), 2):
            e('v_max3_f32 v%d, v%d, v%d, v%d' % (vM[u], vM[u], vals[k], vals[k + 1]))
    def xreduce(regs, op):
        tmps = [vT0, vT1]
        for sw in ('v_permlane16_swap_b32', 'v_permlane32_swap_b32'):
            for r, t in zip(regs, tmps): e('v_mov_b32 v%d, v%d' % (t, r))
            e('s_nop 1')
            for r, t in zip(regs, tmps): e('%s v%d, v%d' % (sw, r, t))
            e('s_nop 1')
            for r, t in zip(regs, tmps): e('%s v%d, v%d, v%d' % (op, r, r, t))
    xreduce(vM, 'v_max_f32')
    c('softmax: exp / sum / pack')
    vMC = [vVT, vVT + 1]; vL2 = [vVT + 2, vVT + 3]
    for u in range(2):
        e('v_mul_f32 v%d, s%d, v%d' % (vMC[u], sC, vM[u]))
        e('v_mov_b32 v%d, 0' % vL[u])
    for u in range(2):
        for k in range(2):
            r = vTS + 2 * u + k
            e('v_fma_f32 v%d, v%d, s%d, -v%d' % (r, r, sC, vMC[u]))
    for r in range(vTS, vTS + 4): e('v_exp_f32 v%d, v%d' % (r, r))
    e('s_nop 0')
    for u in range(2): e('v_add_f32 v%d, v%d, v%d' % (vL2[u], vTS + 2 * u, vTS + 2 * u + 1))
    e('v_cvt_pk_bf16_f32 v%d, v%d, v%d' % (vTS, vTS, vTS + 1))
    e('v_mov_b32 v%d, 0' % (vTS + 1))
    e('v_cvt_pk_bf16_f32 v%d, v%d, v%d' % (vTS + 2, vTS + 2, vTS + 3))
    e('v_mov_b32 v%d, 0' % (vTS + 3))
    for b in range(8):
        for u in range(2):
            base = vS + b * 16 + u * 8
            for k in range(8): e('v_fma_f32 v%d, v%d, s%d, -v%d' % (base + k, base + k, sC, vMC[u]))
            for k in range(8): e('v_exp_f32 v%d, v%d' % (base + k, base + k))
            for k in range(0, 8, 2):
                e('v_add_f32 v%d, v%d, v%d' % (vL[u], vL[u], base + k))
                e('v_add_f32 v%d, v%d, v%d' % (vL2[u], vL2[u], base + k + 1))
            for k in range(4):
                e('v_cvt_pk_bf16_f32 v%d, v%d, v%d' % (vP + b * 8 + u * 4 + k, base + 2 * k, base + 2 * k + 1))
    for u in range(2): e('v_add_f32 v%d, v%d, v%d' % (vL[u], vL[u], vL2[u]))
    xreduce(vL, 'v_add_f32')
    c('LDS / output addresses; publish (m,l)')
    a0, a1, a2 = vVT, vVT + 1, vVT + 2
    e('v_lshrrev_b32 v%d, 4, v%d' % (a0, vVOFF))
    e('v_and_b32 v%d, 15, v%d' % (a1, a0))
    e('v_lshrrev_b32 v%d, 4, v%d' % (a2, a0))
    e('v_mul_u32_u24 v%d, %d, v%d' % (vWA, ROW, a1))
    e('v_lshl_add_u32 v%d, v%d, 7, v%d' % (vWA, a2, vWA))
    e('s_mul_i32 s%d, s%d, %d' % (sT, sWAVE, WSZ))
    e('v_add_u32 v%d, s%d, v%d' % (vWA, sT, vWA))
    e('s_lshl_b32 s%d, s%d, 8' % (sT, sWAVE))
    e('s_add_u32 s%d, s%d, %d' % (sT, sT, MLB))
    e('v_lshlrev_b32 v%d, 3, v%d' % (vMLA, a1))
    e('v_add_u32 v%d, s%d, v%d' % (vMLA, sT, vMLA))
    for u in range(2):
        e('ds_write_b64 v%d, v[%d:%d] offset:%d' % (vMLA, vM[u], vL[u], u * 128))
    e('v_lshrrev_b32 v%d, 4, v0' % a0)
    e('v_and_b32 v%d, 15, v0' % a1)
    e('v_mul_u32_u24 v%d, %d, v%d' % (vRA, ROW, a0))
    e('v_lshl_add_u32 v%d, v%d, 5, v%d' % (vRA, a1, vRA))
    e('v_add_u32 v%d, %d, v%d' % (vRB, 4 * WSZ, vRA))
    e('v_lshlrev_b32 v%d, 3, v%d' % (vRM, a0))
    e('v_add_u32 v%d, %d, v%d' % (vRM, MLB, vRM))
    e('v_lshlrev_b32 v%d, 8, v%d' % (vOA, a0))
    e('v_lshrrev_b32 v%d, 2, v%d' % (a2, a1))
    e('v_lshl_add_u32 v%d, v%d, 6, v%d' % (vOA, a2, vOA))
    e('v_and_b32 v%d, 3, v%d' % (a2, a1))
    e('v_lshl_add_u32 v%d, v%d, 2, v%d' % (vOA, a2, vOA))
    stamp()
    c('tree PV (initialises O)')
    g.wait([('u', 16)])
    sa = unit_slot[16]
    for cc in range(4):
        tb = vVT + (cc % 2) * 8
        e('v_perm_b32 v%d, v%d, v%d, s%d' % (tb, sa + 4 + cc, sa + cc, sPLO))
        e('v_mov_b32 v%d, 0' % (tb + 1))
        e('v_perm_b32 v%d, v%d, v%d, s%d' % (tb + 2, sa + 4 + cc, sa + cc, sPHI))
        e('v_mov_b32 v%d, 0' % (tb + 3))
        e('s_nop 1')
        for h in range(2):
            for u in range(2):
                mf(vO + ((2 * cc + h) * 2 + u) * 4, tb + 2 * h, vTS + 2 * u, '0', k16=True)
    free.append(sa); fill()
    c('V phase')
    def owrite(cc):
        for h in range(2):
            for u in range(2):
                j = 2 * cc + h; d = vO + (j * 2 + u) * 4
                e('ds_write_b128 v%d, v[%d:%d] offset:%d' % (vWA, d, d + 3, u * 16 * ROW + j * 16))
    for b in range(8):
        g.wait([('u', 17 + 2 * b), ('u', 18 + 2 * b)])
        sa, sb = unit_slot[17 + 2 * b], unit_slot[18 + 2 * b]
        rows = [sa + 4 * i for i in range(4)] + [sb + 4 * i for i in range(4)]
        for cc in range(4):
            tb = vVT + (cc % 2) * 8
            for p in range(4):
                e('v_perm_b32 v%d, v%d, v%d, s%d' % (tb + p, rows[2 * p + 1] + cc, rows[2 * p] + cc, sPLO))
            for p in range(4):
                e('v_perm_b32 v%d, v%d, v%d, s%d' % (tb + 4 + p, rows[2 * p + 1] + cc, rows[2 * p] + cc, sPHI))
            if b == 7 and cc > 0: owrite(cc - 1)
            for h in range(2):
                for u in range(2):
                    d = vO + ((2 * cc + h) * 2 + u) * 4
                    mf(d, tb + 4 * h, vP + b * 8 + u * 4, acc(d))
        free.append(sa); free.append(sb)
        if PRIO == 1 and b == 3: e('s_setprio 0')
        if GROW and b % 2 == 1: free.append(vP + (b - 1) * 8)
        fill()
    stamp()
    c('combine through LDS')
    e('s_nop 7')
    owrite(3)
    e('s_waitcnt lgkmcnt(0)')
    stamp()
    e('s_barrier')
    stamp()
    vR = 16; vX = 32; vF = vRING; vMM = vRING + 8; vLL = vRING + 9; vY = vRING + 16
    def rdp(w):
        base = vRA if w < 4 else vRB; off = (w % 4) * WSZ
        e('ds_read_b128 v[%d:%d], v%d offset:%d' % (vX + 8 * w, vX + 8 * w + 3, base, off))
        e('ds_read_b128 v[%d:%d], v%d offset:%d' % (vX + 8 * w + 4, vX + 8 * w + 7, base, off + 16))
    for w in range(NW): e('ds_read_b64 v[%d:%d], v%d offset:%d' % (vR + 2 * w, vR + 2 * w + 1, vRM, w * 256))
    for w in range(3): rdp(w)
    e('s_waitcnt lgkmcnt(6)')
    for w in range(3, 7): rdp(w)
    e('v_max_f32 v%d, v%d, v%d' % (vMM, vR, vR + 2))
    for w in range(2, NW, 2): e('v_max3_f32 v%d, v%d, v%d, v%d' % (vMM, vMM, vR + 2 * w, vR + 2 * w + 2))
    e('v_mul_f32 v%d, s%d, v%d' % (vMM, sC, vMM))
    for w in range(NW): e('v_fma_f32 v%d, v%d, s%d, -v%d' % (vF + w, vR + 2 * w, sC, vMM))
    for w in range(NW): e('v_exp_f32 v%d, v%d' % (vF + w, vF + w))
    e('s_nop 0')
    e('v_mul_f32 v%d, v%d, v%d' % (vLL, vF, vR + 1))
    for w in range(1, NW): e('v_fma_f32 v%d, v%d, v%d, v%d' % (vLL, vF + w, vR + 2 * w + 1, vLL))
    e('v_rcp_f32 v%d, v%d' % (vLL, vLL))
    e('s_waitcnt lgkmcnt(8)')
    rdp(7)
    def pk(w, k):
        f = vF + (w & ~1)
        sel = 'op_sel:[0,1,0] op_sel_hi:[1,1,1]' if (w & 1) else 'op_sel_hi:[1,0,1]'
        if w == 0:
            e('v_pk_mul_f32 v[%d:%d], v[%d:%d], v[%d:%d] op_sel_hi:[1,0]' % (vY + k, vY + k + 1, vX + k, vX + k + 1, f, f + 1))
        else:
            e('v_pk_fma_f32 v[%d:%d], v[%d:%d], v[%d:%d], v[%d:%d] %s' % (vY + k, vY + k + 1, vX + 8 * w + k, vX + 8 * w + k + 1, f, f + 1, vY + k, vY + k + 1, sel))
    for w in range(NW):
        if w >= 3: e('s_waitcnt lgkmcnt(%d)' % (2 * (7 - w)))
        for k in range(0, 8, 2): pk(w, k)
    for k in range(8): e('v_mul_f32 v%d, v%d, v%d' % (vY + k, vY + k, vLL))
    for r in range(4): e('v_cvt_pk_bf16_f32 v%d, v%d, v%d' % (vY + 8 + r, vY + r, vY + 4 + r))
    if int(opts.get('x4', 1)):
        D = vY + 8
        e('s_mov_b32 s%d, 0xcccccccc' % sT); e('s_mov_b32 s%d, 0xcccccccc' % sT2)
        for (msk, qp, prs) in (('s[%d:%d]' % (sODD, sODD + 1), '[1,0,3,2]', ((0, 1), (2, 3))), ('s[%d:%d]' % (sT, sT2), '[2,3,0,1]', ((0, 2), (1, 3)))):
            e('s_mov_b64 exec, %s' % msk)
            for x, y in prs: e('v_swap_b32 v%d, v%d' % (D + x, D + y))
            e('s_mov_b64 exec, -1')
            e('s_nop 1')
            for x, y in prs: e('v_mov_b32_dpp v%d, v%d quad_perm:%s row_mask:0xf bank_mask:0xf' % (D + y, D + y, qp))
            e('s_mov_b64 exec, %s' % msk)
            for x, y in prs: e('v_swap_b32 v%d, v%d' % (D + x, D + y))
        e('s_mov_b64 exec, -1')
        e('v_lshlrev_b32 v%d, 4, v0' % vOA)
        e('buffer_store_dwordx4 v[%d:%d], v%d, s[%d:%d], 0 offen%s' % (D, D + 3, vOA, sOUT, sOUT + 3, (' ' + opts.get('fs', '')).rstrip()))
    else:
        for r in range(4):
            e('buffer_store_dword v%d, v%d, s[%d:%d], 0 offen offset:%d' % (vY + 8 + r, vOA, sOUT, sOUT + 3, 16 * r))
    if STAMP:
        e('s_waitcnt vmcnt(0)')
        stamp()
        e('s_load_dwordx2 s[36:37], s[0:1], 64')
        e('s_lshl_b32 s%d, s2, 3' % sT); e('s_add_u32 s%d, s%d, s%d' % (sT, sT, sWAVE)); e('s_lshl_b32 s%d, s%d, 6' % (sT, sT))
        e('s_waitcnt lgkmcnt(0)')
        e('s_add_u32 s36, s36, s%d' % sT); e('s_addc_u32 s37, s37, 0'); e('s_mov_b32 s38, 64'); e('s_mov_b32 s39, 0x00020000')
        e('v_mov_b32 v1, 0')
        for k in range(nst[0]):
            e('v_mov_b32 v2, s%d' % (64 + 2 * k))
            e('buffer_store_dword v2, v1, s[36:39], 0 offen offset:%d' % (4 * k)); e('s_nop 1')
    g.lab('L_end')
    e('s_endpgm')
    lds = MLB + NW * 256
    out = HDR + '; @launch grid=(256,1,1) block=(512,1,1) lds=%d\n' % lds
    out += '.amdgcn_target "amdgcn-amd-amdhsa--gfx950"\n.text\n.globl %s_kernel\n.p2align 8\n.type %s_kernel,@function\n%s_kernel:\n' % (NAME, NAME, NAME)
    out += '\n'.join(g.l) + '\n'
    out += '''.section .rodata,"a"
.p2align 6
.amdhsa_kernel %s_kernel
  .amdhsa_next_free_vgpr 256
  .amdhsa_next_free_sgpr %d
  .amdhsa_accum_offset 256
  .amdhsa_group_segment_fixed_size 0
  .amdhsa_kernarg_size 72
  .amdhsa_user_sgpr_count 2
  .amdhsa_user_sgpr_kernarg_segment_ptr 1
  .amdhsa_system_sgpr_workgroup_id_x 1
.end_amdhsa_kernel
''' % (NAME, 96 if STAMP else 64)
    return out

if __name__ == '__main__':
    path = sys.argv[1]
    opts = dict(a.split('=') for a in sys.argv[2:])
    opts = {k: v.replace('+', ' ') for k, v in opts.items()}
    open(path, 'w').write(gen(opts))
```

```python
import sys, struct, math
NAME = "standalone__tree_speculative_verify_tree_attention_over_candidate_token_tree__sampling"
HDR = open('cdna_kernels/%s.s.ref' % NAME).read().split('; @launch')[0]
def f32(x): return struct.unpack('<I', struct.pack('<f', x))[0]

class G:
    def __init__(s): s.l = []; s.vm = []
    def e(s, t): s.l.append('    ' + t)
    def c(s, t): s.l.append('    ; ' + t)
    def lab(s, t): s.l.append(t + ':')
    def load(s, t, tag): s.e(t); s.vm.append(tag)
    def wait(s, tags):
        idx = [i for i, t in enumerate(s.vm) if t in tags]
        if not idx: return
        last = max(idx)
        s.e('s_waitcnt vmcnt(%d)' % (len(s.vm) - 1 - last))
        s.vm = s.vm[last + 1:]

def gen(opts):
    NW = 8
    FLK = (' ' + opts.get('fk', '')).rstrip(); FLV = (' ' + opts.get('fv', 'nt')).rstrip()
    PRIO = int(opts.get('prio', 0)); STAMP = int(opts.get('stamp', 0)); GROW = int(opts.get('grow', 1))
    g = G(); e, c = g.e, g.c
    vKOFF = 1; vVOFF = 2; vADD0 = 3; vADD1 = 4; vKOFF1 = 5
    vTS = 6
    vM = [10, 12]; vL = [11, 13]
    vT0 = 14; vT1 = 15
    vQ = 16; vVT = 32; vS = 48; vRING = 176
    slots = [vRING + 16 * i for i in range(4)]
    vTMP = vRING + 64
    vP = vS; vO = vS + 64
    vWA = 1; vMLA = 5; vRA = 3; vRB = 4; vRM = 14; vOA = 15
    sWAVE = 3
    sQ, sK, sV, sKT, sVT, sMK, sOUT = 8, 12, 16, 20, 24, 28, 32
    sPTR = 36
    sC = 52; sPLO = 53; sPHI = 54; s4096 = 55; sOFFK = 56; sOFFV = 57; sT = 58; sT2 = 59; sBIG = 60; sODD = 62
    SCALE = 128 ** -0.5; CEXP = SCALE * math.log2(math.e); BIG = -1e9 / SCALE
    ROW = 528; WSZ = 32 * ROW; MLB = NW * WSZ
    nst = [0]
    def stamp():
        if not STAMP: return
        e('s_memrealtime s[%d:%d]' % (64 + 2 * nst[0], 65 + 2 * nst[0])); e('s_waitcnt lgkmcnt(0)'); nst[0] += 1

    FAST = int(opts.get('fast', 0)); DRY = int(opts.get('dry', 0))
    if FAST:
        PACE = 0; LAT = 0; ROT = '0,0'; WP = None; RP = [8, 9, 10, 11]; WB = 12; WMAX = 7 << 12; cnt = {}
        e('s_cmpk_ge_u32 s2, 0x100')
        e('s_cbranch_scc1 L_end')
        stamp()
        e('s_load_dwordx16 s[%d:%d], s[0:1], 0' % (sPTR, sPTR + 15))
        e('v_lshrrev_b32 v%d, 6, v0' % vT0)
        e('v_bfe_u32 v22, v0, 4, 2')
        e('v_readfirstlane_b32 s%d, v%d' % (sWAVE, vT0))
        e('v_lshlrev_b32 v23, 4, v22')
        e('v_and_b32 v20, 15, v0')
        e('v_lshl_add_u32 v10, v20, 8, v23')
        e('v_and_b32 v20, 13, v0')
        e('v_lshl_add_u32 v%d, v20, 6, v23' % vKOFF)
        e('v_and_b32 v20, 2, v0')
        e('v_lshl_add_u32 v%d, v20, 10, v%d' % (vKOFF, vKOFF))
        e('v_xor_b32 v%d, 0x440, v%d' % (vKOFF1, vKOFF))
        e('s_lshl_b32 s%d, s2, 19' % sT)
        e('s_lshl_b32 s4, s%d, 12' % sWAVE)
        e('s_add_u32 s%d, s%d, s4' % (sT, sT))
        e('s_lshl_b32 s%d, s%d, 16' % (sOFFK, sWAVE))
        e('s_lshl_b32 s%d, s2, 13' % sT2)
        e('s_movk_i32 s%d, 0x1000' % s4096)
        e('s_movk_i32 s%d, 0x2000' % (sQ + 2))
        e('s_mov_b32 s%d, 0x00020000' % (sQ + 3))
        e('s_mov_b32 s%d, %d' % (sK + 2, 524288 - WMAX))
        e('s_mov_b32 s%d, s%d' % (sK + 3, sQ + 3))
        e('s_waitcnt lgkmcnt(0)')
        e('s_add_u32 s%d, s%d, s%d' % (sQ, sPTR, sT2)); e('s_addc_u32 s%d, s%d, 0' % (sQ + 1, sPTR + 1))
        e('s_add_u32 s%d, s%d, s%d' % (sK, sPTR + 2, sT)); e('s_addc_u32 s%d, s%d, 0' % (sK + 1, sPTR + 3))
    else:
        e('s_cmp_ge_u32 s2, 256')
        e('s_cbranch_scc1 L_end')
        stamp()
        e('s_load_dwordx16 s[%d:%d], s[0:1], 0' % (sPTR, sPTR + 15))
        PACE = int(opts.get('pace', 0)); LEAD = int(opts.get('lead', 4 * PACE)); SLP = int(opts.get('slp', 1))
        if PACE: e('s_memrealtime s[4:5]')
        RM = int(opts.get('remap', 0))
        if RM == 1:
            e('s_and_b32 s4, s2, 7'); e('s_lshl_b32 s4, s4, 5'); e('s_lshr_b32 s2, s2, 3'); e('s_or_b32 s2, s2, s4')
        if RM == 2:
            e('s_and_b32 s4, s2, 7'); e('s_lshl_b32 s4, s4, 2'); e('s_bfe_u32 s5, s2, 0x20003'); e('s_or_b32 s4, s4, s5')
            e('s_andn2_b32 s2, s2, 31'); e('s_or_b32 s2, s2, s4')
        e('v_lshrrev_b32 v%d, 6, v0' % vT0)
        e('v_and_b32 v%d, 63, v0' % vT1)
        e('v_readfirstlane_b32 s%d, v%d' % (sWAVE, vT0))
        WP = [int(x) for x in opts['wp'].split(',')] if 'wp' in opts else None
        RP = [b for b in range(8, 15) if b not in WP] if WP else [8, 9, 10, 11]
        vKT = [48, 49]
        e('v_lshlrev_b32 v%d, 4, v%d' % (vVOFF, vT1))
        e('v_lshrrev_b32 v22, 4, v%d' % vT1)
        if WP:
            e('v_and_b32 v%d, 0xff, v%d' % (vVOFF, vVOFF))
            for j in range(2):
                e('v_bfe_u32 v20, v22, %d, 1' % j); e('v_lshl_add_u32 v%d, v20, %d, v%d' % (vVOFF, RP[j], vVOFF))
        e('v_lshlrev_b32 v23, 4, v22')
        c('K voffsets: slot = 2a+l ; key row = 4*(slot&3) + (slot>>2) ; + ((mu^l)*64) + g*16')
        for ll, dst in ((0, vKOFF), (1, vKOFF1)):
            e('v_and_b32 v20, 14, v%d' % vT1); e('v_or_b32 v20, %d, v20' % ll)
            e('v_and_b32 v21, 3, v20'); e('v_lshlrev_b32 v21, 10, v21'); e('v_bfe_u32 v20, v20, 2, 2'); e('v_lshl_add_u32 v21, v20, 8, v21')
            e('v_and_b32 v20, 1, v%d' % vT1); e('v_xor_b32 v20, %d, v20' % ll); e('v_lshl_add_u32 v21, v20, 6, v21')
            e('v_add_u32 v%d, v21, v23' % dst)
            if WP:
                e('v_mov_b32 v%d, v%d' % (vKT[ll], dst))
                e('v_and_b32 v%d, 0xff, v%d' % (dst, dst))
                for j in range(4):
                    e('v_bfe_u32 v20, v%d, %d, 1' % (vKT[ll], 8 + j)); e('v_lshl_add_u32 v%d, v20, %d, v%d' % (dst, RP[j], dst))
        c('Q voffset (v10) = n*256 + g*16 ; mask voffset (v11) = (n&7)*16 + g*2')
        e('v_and_b32 v20, 15, v%d' % vT1)
        e('v_lshl_add_u32 v10, v20, 8, v23')
        e('v_and_b32 v20, 7, v%d' % vT1)
        e('v_lshlrev_b32 v21, 1, v22')
        e('v_lshl_add_u32 v11, v20, 4, v21')
        e('s_mov_b32 s%d, 0x%08x' % (sC, f32(CEXP)))
        e('s_mov_b32 s%d, 0x05040100' % sPLO)
        e('s_mov_b32 s%d, 0x07060302' % sPHI)
        e('s_mov_b32 s%d, 4096' % s4096)
        e('s_mov_b32 s%d, 0x%08x' % (sBIG, f32(BIG)))
        e('s_mov_b32 s%d, 0xaaaaaaaa' % sODD); e('s_mov_b32 s%d, 0xaaaaaaaa' % (sODD + 1))
        e('s_lshl_b32 s%d, s2, 19' % sT)
        WB = int(opts.get('wb', 12))
        if WP:
            e('s_mov_b32 s%d, 0' % sT2)
            for j in range(3):
                e('s_bfe_u32 s4, s%d, 0x%x' % (sWAVE, 0x10000 | j)); e('s_lshl_b32 s4, s4, %d' % WP[j]); e('s_or_b32 s%d, s%d, s4' % (sT2, sT2))
        else:
            e('s_lshl_b32 s%d, s%d, %d' % (sT2, sWAVE, WB))
        if 'wx' in opts:
            e('s_bfe_u32 s4, s2, 0x%x' % (0x10000 | int(opts['wx']))); e('s_lshl_b32 s4, s4, %d' % (WP[2] if WP else 14)); e('s_xor_b32 s%d, s%d, s4' % (sT2, sT2))
        WMAX = sum(1 << x for x in WP) if WP else 7 << WB
        tbits = [b for b in range(12, 19) if not WB <= b < WB + 3]
        if opts.get('tord'): tbits = [tbits[int(ch)] for ch in opts['tord']]
        dep = lambda t: sum(((t >> i) & 1) << b for i, b in enumerate(tbits))
        cnt = {}
        LAT = int(opts.get('lat', 0))
        if not LAT: e('s_add_u32 s%d, s%d, s%d' % (sT, sT, sT2))
        ROT = opts.get('rot', '')
        if ROT:
            sh, mul = (int(x) for x in ROT.split(','))
            e('s_lshr_b32 s%d, s2, %d' % (sOFFK, sh))
            e('s_mul_i32 s%d, s%d, %d' % (sOFFK, sOFFK, mul))
            HROT = int(opts.get('hrot', 0))
            if HROT == 1:
                e('s_mul_i32 s%d, s2, 0x9e3779b1' % sOFFK); e('s_lshr_b32 s%d, s%d, 28' % (sOFFK, sOFFK))
            if HROT == 2:
                e('s_lshl_b32 s%d, s2, 3' % sOFFK); e('s_add_u32 s%d, s%d, s%d' % (sOFFK, sOFFK, sWAVE))
                e('s_mul_i32 s%d, s%d, 0x9e3779b1' % (sOFFK, sOFFK)); e('s_lshr_b32 s%d, s%d, 28' % (sOFFK, sOFFK))
            if HROT == 3:
                e('s_mul_i32 s%d, s2, 0x9e3779b1' % sOFFK); e('s_lshr_b32 s%d, s%d, 16' % (sOFFV, sOFFK)); e('s_xor_b32 s%d, s%d, s%d' % (sOFFK, sOFFK, sOFFV))
                e('s_mul_i32 s%d, s%d, 0x85ebca6b' % (sOFFK, sOFFK)); e('s_lshr_b32 s%d, s%d, 28' % (sOFFK, sOFFK))
            if int(opts.get('wrot', 0)):
                e('s_mul_i32 s%d, s%d, %d' % (sOFFV, sWAVE, int(opts['wrot'])))
                e('s_add_u32 s%d, s%d, s%d' % (sOFFK, sOFFK, sOFFV))
            e('s_and_b32 s%d, s%d, 15' % (sOFFK, sOFFK))
            if LAT:
                e('s_mul_i32 s5, s%d, %d' % (sOFFK, LAT)); e('s_add_u32 s5, s5, s%d' % sWAVE); e('s_and_b32 s5, s5, 7'); e('s_lshl_b32 s5, s5, 12')
                e('s_lshl_b32 s4, s%d, 15' % sOFFK); e('s_mov_b32 s6, s4'); e('s_mov_b32 s7, s5')
                e('s_or_b32 s%d, s4, s5' % sOFFK)
            else:
                e('s_lshl_b32 s%d, s%d, 15' % (sOFFK, sOFFK))
            e('s_mov_b32 s%d, s%d' % (sOFFV, sOFFK))
        else:
            e('s_mov_b32 s%d, 0' % sOFFK)
            e('s_mov_b32 s%d, 0' % sOFFV)
        e('s_waitcnt lgkmcnt(0)')
    def srd(d, p, off_sgpr, nrec):
        e('s_add_u32 s%d, s%d, s%d' % (d, sPTR + 2 * p, off_sgpr))
        e('s_addc_u32 s%d, s%d, 0' % (d + 1, sPTR + 2 * p + 1))
        e('s_mov_b32 s%d, %d' % (d + 2, nrec))
        e('s_mov_b32 s%d, 0x00020000' % (d + 3))
    STEP = 32768 * int(opts.get('step', 1))
    if not FAST: srd(sK, 1, sT, 524288 if LAT else 524288 - WMAX)
    EARLY = int(opts.get('early', 0))
    free = list(slots); unit_slot = {}
    kvo = lambda s: vKOFF1 if (s & 1) else vKOFF
    kio = lambda s: 128 * (s >> 1)
    NU = 33
    def adv(so, a):
        if WB != 12 or opts.get('tord'):
            cnt[so] = cnt.get(so, 0) + 1
            e('s_mov_b32 s%d, %d' % (so, dep(cnt[so] & 15)))
        elif LAT:
            e('s_add_u32 s%d, s%d, 32768' % (a, a)); e('s_and_b32 s%d, s%d, 0x7ffff' % (a, a))
            e('s_add_u32 s%d, s%d, %d' % (a + 1, a + 1, 4096 * LAT)); e('s_and_b32 s%d, s%d, 0x7fff' % (a + 1, a + 1))
            e('s_or_b32 s%d, s%d, s%d' % (so, a, a + 1))
        else:
            e('s_add_u32 s%d, s%d, %d' % (so, so, STEP))
            if ROT: e('s_and_b32 s%d, s%d, 0x7ffff' % (so, so))
    def issue_unit(j):
        sl = free.pop(0); unit_slot[j] = sl
        if PRIO in (2, 4) and j == 16: e('s_setprio 0')
        if PRIO == 3 and j == 16: e('s_setprio 1')
        if PRIO == 3 and j == 25: e('s_setprio 0')
        if PRIO == 4 and j == 8: e('s_setprio 2')
        if PRIO == 5 and j in (8, 16, 25): e('s_setprio %d' % {8: 2, 16: 1, 25: 0}[j])
        if PACE and j != 16:
            due = (j if j < 16 else j - 1) * PACE - LEAD
            if due > 0:
                g.lab('L_p%d' % j)
                e('s_memrealtime s[6:7]')
                e('s_waitcnt lgkmcnt(0)')
                e('s_sub_u32 s6, s6, s4')
                e('s_cmp_ge_u32 s6, %d' % due)
                e('s_cbranch_scc1 L_g%d' % j)
                e('s_sleep %d' % SLP)
                e('s_branch L_p%d' % j)
                g.lab('L_g%d' % j)
        if j < 16:
            for s in range(4):
                g.load('buffer_load_dwordx4 v[%d:%d], v%d, s[%d:%d], s%d offen offset:%d%s' %
                       (sl + 4 * s, sl + 4 * s + 3, kvo(s), sK, sK + 3, sOFFK, kio(s), FLK), ('u', j))
            adv(sOFFK, 4)
        elif j == 16:
            va = vVOFF
            if WP:
                va = sl + 15
                e('v_and_b32 v%d, 63, v0' % va); e('v_lshlrev_b32 v%d, 4, v%d' % (va, va))
            for i in range(2):
                g.load('buffer_load_dwordx4 v[%d:%d], v%d, s[%d:%d], 0 offen offset:%d' %
                       (sl + 4 * i, sl + 4 * i + 3, va, sVT, sVT + 3, 1024 * i), ('u', j))
        else:
            if RP[3] > 11: e('s_add_u32 s5, s%d, %d' % (sOFFV, 1 << RP[3]))
            for i in range(4):
                so, io = sOFFV, ((i & 1) << RP[2]) + ((i >> 1) << RP[3])
                if RP[3] > 11 and i >> 1: so, io = 5, (i & 1) << RP[2]
                assert io < 4096
                g.load('buffer_load_dwordx4 v[%d:%d], v%d, s[%d:%d], s%d offen offset:%d%s' %
                       (sl + 4 * i, sl + 4 * i + 3, vVOFF, sV, sV + 3, so, io, FLV), ('u', j))
            adv(sOFFV, 6)
    nxt = [0]; done = [0]; DK = int(opts.get('dk', 99)); DV = int(opts.get('dv', 99))
    def fill():
        while free and nxt[0] < NU and nxt[0] - done[0] < (DK if nxt[0] < 16 else DV):
            issue_unit(nxt[0]); nxt[0] += 1
    if PRIO: e('s_setprio 3')
    def qloads():
        for u in range(2):
            for s in range(4):
                r = vQ + (u * 4 + s) * 4
                g.load('buffer_load_dwordx4 v[%d:%d], v10, s[%d:%d], %s offen offset:%d' %
                       (r, r + 3, sQ, sQ + 3, ('s%d' % s4096) if u else '0', 64 * s), 'q')
    if FAST:
        slT = vS + 6 * 16
        qloads(); fill()
        e('s_mov_b32 s%d, 0xaaaaaaaa' % sODD); e('s_mov_b32 s%d, s%d' % (sODD + 1, sODD))
        def srd2(d, p, off_sgpr, nrec):
            e('s_add_u32 s%d, s%d, s%d' % (d, sPTR + 2 * p, off_sgpr)); e('s_addc_u32 s%d, s%d, 0' % (d + 1, sPTR + 2 * p + 1))
            e(('s_movk_i32 s%d, %d' if nrec < 32768 else 's_mov_b32 s%d, %d') % (d + 2, nrec)); e('s_mov_b32 s%d, s%d' % (d + 3, sQ + 3))
        srd2(sV, 2, sT, 524288 - WMAX)
        srd2(sOUT, 6, sT2, 8192)
        e('s_lshl_b32 s%d, s2, 11' % sT)
        srd2(sKT, 3, sT, 2048)
        srd2(sVT, 4, sT, 2048)
        e('s_lshr_b32 s%d, s2, 3' % sT)
        e('s_lshl_b32 s%d, s%d, 7' % (sT, sT))
        srd2(sMK, 5, sT, 128)
        e('v_and_b32 v12, 7, v0'); e('v_bfe_u32 v13, v0, 4, 2'); e('v_lshlrev_b32 v13, 1, v13'); e('v_lshl_add_u32 v11, v12, 4, v13')
        for s in range(4):
            g.load('buffer_load_dwordx4 v[%d:%d], v%d, s[%d:%d], 0 offen offset:%d' %
                   (slT + 4 * s, slT + 4 * s + 3, kvo(s), sKT, sKT + 3, kio(s)), 'kt')
        g.load('buffer_load_ushort v%d, v11, s[%d:%d], 0 offen' % (vADD0, sMK, sMK + 3), 'mk')
        g.load('buffer_load_ushort v%d, v11, s[%d:%d], 0 offen offset:8' % (vADD1, sMK, sMK + 3), 'mk')
        e('v_and_b32 v%d, 63, v0' % vVOFF); e('v_lshlrev_b32 v%d, 4, v%d' % (vVOFF, vVOFF))
        e('s_lshl_b32 s%d, s%d, 16' % (sOFFV, sWAVE))
        e('s_mov_b32 s%d, 0x%08x' % (sC, f32(CEXP)))
        e('s_mov_b32 s%d, 0x05040100' % sPLO)
        e('s_mov_b32 s%d, 0x07060302' % sPHI)
        e('s_mov_b32 s%d, 0x%08x' % (sBIG, f32(BIG)))
    else:
        slT = free.pop(0)
        if EARLY: fill()
        srd(sV, 2, sT, 524288 if LAT else 524288 - WMAX)
        e('s_lshl_b32 s%d, s2, 13' % sT)
        srd(sQ, 0, sT, 8192)
        srd(sOUT, 6, sT, 8192)
        e('s_lshl_b32 s%d, s2, 11' % sT)
        srd(sKT, 3, sT, 2048)
        srd(sVT, 4, sT, 2048)
        e('s_lshr_b32 s%d, s2, 3' % sT)
        e('s_lshl_b32 s%d, s%d, 7' % (sT, sT))
        srd(sMK, 5, sT, 128)

        c('Q loads')
        for u in range(2):
            for s in range(4):
                r = vQ + (u * 4 + s) * 4
                g.load('buffer_load_dwordx4 v[%d:%d], v10, s[%d:%d], %s offen offset:%d' %
                       (r, r + 3, sQ, sQ + 3, ('s%d' % s4096) if u else '0', 64 * s), 'q')
        c('tree K + mask loads')
        for s in range(4):
            g.load('buffer_load_dwordx4 v[%d:%d], v%d, s[%d:%d], 0 offen offset:%d' %
                   (slT + 4 * s, slT + 4 * s + 3, vKT[s & 1] if WP else kvo(s), sKT, sKT + 3, kio(s)), 'kt')
        g.load('buffer_load_ushort v%d, v11, s[%d:%d], 0 offen' % (vADD0, sMK, sMK + 3), 'mk')
        g.load('buffer_load_ushort v%d, v11, s[%d:%d], 0 offen offset:8' % (vADD1, sMK, sMK + 3), 'mk')
        if int(opts.get('vpre', 0)):
            g.load('buffer_load_dword v%d, off, s[%d:%d], 0' % (vT0, sV, sV + 3), 'mk')
        fill()
    def mf(d, a, b, cc, k16=False):
        if k16: e('v_mfma_f32_16x16x16_bf16 v[%d:%d], v[%d:%d], v[%d:%d], %s' % (d, d + 3, a, a + 1, b, b + 1, cc))
        else: e('v_mfma_f32_16x16x32_bf16 v[%d:%d], v[%d:%d], v[%d:%d], %s' % (d, d + 3, a, a + 3, b, b + 3, cc))
    acc = lambda d: 'v[%d:%d]' % (d, d + 3)
    def qk(sl, dst, tmp):
        e('s_mov_b64 exec, s[%d:%d]' % (sODD, sODD + 1))
        for h in range(2):
            for k in range(4):
                e('v_swap_b32 v%d, v%d' % (sl + 8 * h + k, sl + 8 * h + 4 + k))
        e('s_mov_b64 exec, -1')
        e('s_nop 1')
        for u in range(2):
            for x in range(2):
                d = dst[u] if x == 0 else tmp[u]
                for h in range(2):
                    s = 2 * h + x
                    mf(d, sl + 4 * s, vQ + (u * 4 + s) * 4, '0' if h == 0 else acc(d))
    def qk_fix(dst, tmp, rs=range(4)):
        for u in range(2):
            for r in rs:
                e('v_add_f32 v%d, v%d, v%d' % (dst[u] + r, dst[u] + r, tmp[u] + (r ^ 1)))
    vTT = vS + 7 * 16
    def tree_qk():
        c('tree QK')
        g.wait(['q', 'kt', 'mk'])
        qk(slT, [vTT, vTT + 4], [vTT + 8, vTT + 12])
        if not FAST: free.append(slT); fill()
        c('mask term: add = (1 - mask) * (-1e9/scale) ; waves != 0 -> -inf')
        e('v_lshlrev_b32 v%d, 16, v%d' % (vADD0, vADD0))
        e('v_lshlrev_b32 v%d, 16, v%d' % (vADD1, vADD1))
        e('v_sub_f32 v%d, 1.0, v%d' % (vADD0, vADD0))
        e('v_sub_f32 v%d, 1.0, v%d' % (vADD1, vADD1))
        e('v_mul_f32 v%d, s%d, v%d' % (vADD0, sBIG, vADD0))
        e('v_mul_f32 v%d, s%d, v%d' % (vADD1, sBIG, vADD1))
        e('s_cmp_eq_u32 s%d, 0' % sWAVE)
        e('s_cbranch_scc1 L_w0')
        e('v_mov_b32 v%d, 0xff800000' % vADD0)
        e('v_mov_b32 v%d, 0xff800000' % vADD1)
        g.lab('L_w0')
        e('s_nop 4')
        qk_fix([vTT, vTT + 4], [vTT + 8, vTT + 12], range(2))
        e('v_add_f32 v%d, v%d, v%d' % (vTS + 0, vTT + 0, vADD0))
        e('v_add_f32 v%d, v%d, v%d' % (vTS + 1, vTT + 1, vADD1))
        e('v_add_f32 v%d, v%d, v%d' % (vTS + 2, vTT + 4, vADD0))
        e('v_add_f32 v%d, v%d, v%d' % (vTS + 3, vTT + 5, vADD1))

    stamp()
    g.wait(['q'])
    stamp()
    if not EARLY and not FAST: tree_qk()
    c('K phase')
    for t in range(16):
        b, tau = t // 2, t % 2
        g.wait([('u', t)])
        sl = unit_slot[t]
        dst = [vS + b * 16 + u * 8 + tau * 4 for u in range(2)]
        tmp = [vTMP + (t % 2) * 8 + u * 4 for u in range(2)]
        qk(sl, dst, tmp)
        if t > 0: qk_fix(*prev)
        prev = (dst, tmp)
        free.append(sl); done[0] += 1
        if t == 15: free.append(vQ)
        if PRIO == 1 and t == 7: e('s_setprio 2')
        if PRIO == 1 and t == 15: e('s_setprio 1')
        fill()
        if EARLY and t == 2: tree_qk()
        if FAST and t == 3: tree_qk()
    stamp()
    c('softmax: max')
    e('s_nop 7')
    qk_fix(*prev)
    free.append(vTMP); fill()
    for u in range(2):
        vals = [vS + b * 16 + u * 8 + k for b in range(8) for k in range(8)] + [vTS + 2 * u, vTS + 2 * u + 1]
        e('v_max_f32 v%d, v%d, v%d' % (vM[u], vals[0], vals[1]))
        for k in range(2, len(vals), 2):
            e('v_max3_f32 v%d, v%d, v%d, v%d' % (vM[u], vM[u], vals[k], vals[k + 1]))
    def xreduce(regs, op):
        tmps = [vT0, vT1]
        for sw in ('v_permlane16_swap_b32', 'v_permlane32_swap_b32'):
            for r, t in zip(regs, tmps): e('v_mov_b32 v%d, v%d' % (t, r))
            e('s_nop 1')
            for r, t in zip(regs, tmps): e('%s v%d, v%d' % (sw, r, t))
            e('s_nop 1')
            for r, t in zip(regs, tmps): e('%s v%d, v%d, v%d' % (op, r, r, t))
    xreduce(vM, 'v_max_f32')
    c('softmax: exp / sum / pack')
    vMC = [vVT, vVT + 1]; vL2 = [vVT + 2, vVT + 3]
    for u in range(2):
        e('v_mul_f32 v%d, s%d, v%d' % (vMC[u], sC, vM[u]))
        e('v_mov_b32 v%d, 0' % vL[u])
    for u in range(2):
        for k in range(2):
            r = vTS + 2 * u + k
            e('v_fma_f32 v%d, v%d, s%d, -v%d' % (r, r, sC, vMC[u]))
    for r in range(vTS, vTS + 4): e('v_exp_f32 v%d, v%d' % (r, r))
    e('s_nop 0')
    for u in range(2): e('v_add_f32 v%d, v%d, v%d' % (vL2[u], vTS + 2 * u, vTS + 2 * u + 1))
    e('v_cvt_pk_bf16_f32 v%d, v%d, v%d' % (vTS, vTS, vTS + 1))
    e('v_mov_b32 v%d, 0' % (vTS + 1))
    e('v_cvt_pk_bf16_f32 v%d, v%d, v%d' % (vTS + 2, vTS + 2, vTS + 3))
    e('v_mov_b32 v%d, 0' % (vTS + 3))
    for b in range(8):
        for u in range(2):
            base = vS + b * 16 + u * 8
            for k in range(8): e('v_fma_f32 v%d, v%d, s%d, -v%d' % (base + k, base + k, sC, vMC[u]))
            for k in range(8): e('v_exp_f32 v%d, v%d' % (base + k, base + k))
            for k in range(0, 8, 2):
                e('v_add_f32 v%d, v%d, v%d' % (vL[u], vL[u], base + k))
                e('v_add_f32 v%d, v%d, v%d' % (vL2[u], vL2[u], base + k + 1))
            for k in range(4):
                e('v_cvt_pk_bf16_f32 v%d, v%d, v%d' % (vP + b * 8 + u * 4 + k, base + 2 * k, base + 2 * k + 1))
    for u in range(2): e('v_add_f32 v%d, v%d, v%d' % (vL[u], vL[u], vL2[u]))
    xreduce(vL, 'v_add_f32')
    c('LDS / output addresses; publish (m,l)')
    a0, a1, a2 = vVT, vVT + 1, vVT + 2
    if WP: e('v_and_b32 v%d, 63, v0' % a0)
    else: e('v_lshrrev_b32 v%d, 4, v%d' % (a0, vVOFF))
    e('v_and_b32 v%d, 15, v%d' % (a1, a0))
    e('v_lshrrev_b32 v%d, 4, v%d' % (a2, a0))
    e('v_mul_u32_u24 v%d, %d, v%d' % (vWA, ROW, a1))
    e('v_lshl_add_u32 v%d, v%d, 7, v%d' % (vWA, a2, vWA))
    e('s_mul_i32 s%d, s%d, %d' % (sT, sWAVE, WSZ))
    e('v_add_u32 v%d, s%d, v%d' % (vWA, sT, vWA))
    e('s_lshl_b32 s%d, s%d, 8' % (sT, sWAVE))
    e('s_add_u32 s%d, s%d, %d' % (sT, sT, MLB))
    e('v_lshlrev_b32 v%d, 3, v%d' % (vMLA, a1))
    e('v_add_u32 v%d, s%d, v%d' % (vMLA, sT, vMLA))
    for u in range(2):
        e('ds_write_b64 v%d, v[%d:%d] offset:%d' % (vMLA, vM[u], vL[u], u * 128))
    e('v_lshrrev_b32 v%d, 4, v0' % a0)
    e('v_and_b32 v%d, 15, v0' % a1)
    e('v_mul_u32_u24 v%d, %d, v%d' % (vRA, ROW, a0))
    e('v_lshl_add_u32 v%d, v%d, 5, v%d' % (vRA, a1, vRA))
    e('v_add_u32 v%d, %d, v%d' % (vRB, 4 * WSZ, vRA))
    e('v_lshlrev_b32 v%d, 3, v%d' % (vRM, a0))
    e('v_add_u32 v%d, %d, v%d' % (vRM, MLB, vRM))
    e('v_lshlrev_b32 v%d, 8, v%d' % (vOA, a0))
    e('v_lshrrev_b32 v%d, 2, v%d' % (a2, a1))
    e('v_lshl_add_u32 v%d, v%d, 6, v%d' % (vOA, a2, vOA))
    e('v_and_b32 v%d, 3, v%d' % (a2, a1))
    e('v_lshl_add_u32 v%d, v%d, 2, v%d' % (vOA, a2, vOA))
    stamp()
    c('tree PV (initialises O)')
    g.wait([('u', 16)])
    sa = unit_slot[16]
    for cc in range(4):
        tb = vVT + (cc % 2) * 8
        e('v_perm_b32 v%d, v%d, v%d, s%d' % (tb, sa + 4 + cc, sa + cc, sPLO))
        e('v_mov_b32 v%d, 0' % (tb + 1))
        e('v_perm_b32 v%d, v%d, v%d, s%d' % (tb + 2, sa + 4 + cc, sa + cc, sPHI))
        e('v_mov_b32 v%d, 0' % (tb + 3))
        e('s_nop 1')
        for h in range(2):
            for u in range(2):
                mf(vO + ((2 * cc + h) * 2 + u) * 4, tb + 2 * h, vTS + 2 * u, '0', k16=True)
    free.append(sa); done[0] += 1; fill()
    c('V phase')
    def owrite(cc):
        for h in range(2):
            for u in range(2):
                j = 2 * cc + h; d = vO + (j * 2 + u) * 4
                e('ds_write_b128 v%d, v[%d:%d] offset:%d' % (vWA, d, d + 3, u * 16 * ROW + j * 16))
    for b in range(8):
        g.wait([('u', 17 + 2 * b), ('u', 18 + 2 * b)])
        sa, sb = unit_slot[17 + 2 * b], unit_slot[18 + 2 * b]
        rows = [sa + 4 * i for i in range(4)] + [sb + 4 * i for i in range(4)]
        for cc in range(4):
            tb = vVT + (cc % 2) * 8
            for p in range(4):
                e('v_perm_b32 v%d, v%d, v%d, s%d' % (tb + p, rows[2 * p + 1] + cc, rows[2 * p] + cc, sPLO))
            for p in range(4):
                e('v_perm_b32 v%d, v%d, v%d, s%d' % (tb + 4 + p, rows[2 * p + 1] + cc, rows[2 * p] + cc, sPHI))
            if b == 7 and cc > 0: owrite(cc - 1)
            for h in range(2):
                for u in range(2):
                    d = vO + ((2 * cc + h) * 2 + u) * 4
                    mf(d, tb + 4 * h, vP + b * 8 + u * 4, acc(d))
        free.append(sa); free.append(sb); done[0] += 2
        if PRIO == 1 and b == 3: e('s_setprio 0')
        if GROW and b % 2 == 1: free.append(vP + (b - 1) * 8)
        fill()
    stamp()
    c('combine through LDS')
    e('s_nop 7')
    owrite(3)
    e('s_waitcnt lgkmcnt(0)')
    stamp()
    if DRY:
        e('s_mov_b32 s4, 0')
        e('s_cmp_lt_u32 s%d, %d' % (sWAVE, DRY))
        e('s_cbranch_scc1 L_comb')
        g.lab('L_bar')
        e('s_mov_b32 s4, 1')
    e('s_barrier')
    if DRY: g.lab('L_comb')
    stamp()
    vR = 16; vX = 32; vF = vRING; vMM = vRING + 8; vLL = vRING + 9; vY = vRING + 16
    def rdp(w):
        base = vRA if w < 4 else vRB; off = (w % 4) * WSZ
        e('ds_read_b128 v[%d:%d], v%d offset:%d' % (vX + 8 * w, vX + 8 * w + 3, base, off))
        e('ds_read_b128 v[%d:%d], v%d offset:%d' % (vX + 8 * w + 4, vX + 8 * w + 7, base, off + 16))
    for w in range(NW): e('ds_read_b64 v[%d:%d], v%d offset:%d' % (vR + 2 * w, vR + 2 * w + 1, vRM, w * 256))
    for w in range(3): rdp(w)
    e('s_waitcnt lgkmcnt(6)')
    for w in range(3, 7): rdp(w)
    e('v_max_f32 v%d, v%d, v%d' % (vMM, vR, vR + 2))
    for w in range(2, NW, 2): e('v_max3_f32 v%d, v%d, v%d, v%d' % (vMM, vMM, vR + 2 * w, vR + 2 * w + 2))
    e('v_mul_f32 v%d, s%d, v%d' % (vMM, sC, vMM))
    for w in range(NW): e('v_fma_f32 v%d, v%d, s%d, -v%d' % (vF + w, vR + 2 * w, sC, vMM))
    for w in range(NW): e('v_exp_f32 v%d, v%d' % (vF + w, vF + w))
    e('s_nop 0')
    e('v_mul_f32 v%d, v%d, v%d' % (vLL, vF, vR + 1))
    for w in range(1, NW): e('v_fma_f32 v%d, v%d, v%d, v%d' % (vLL, vF + w, vR + 2 * w + 1, vLL))
    e('v_rcp_f32 v%d, v%d' % (vLL, vLL))
    e('s_waitcnt lgkmcnt(8)')
    rdp(7)
    def pk(w, k):
        f = vF + (w & ~1)
        sel = 'op_sel:[0,1,0] op_sel_hi:[1,1,1]' if (w & 1) else 'op_sel_hi:[1,0,1]'
        if w == 0:
            e('v_pk_mul_f32 v[%d:%d], v[%d:%d], v[%d:%d] op_sel_hi:[1,0]' % (vY + k, vY + k + 1, vX + k, vX + k + 1, f, f + 1))
        else:
            e('v_pk_fma_f32 v[%d:%d], v[%d:%d], v[%d:%d], v[%d:%d] %s' % (vY + k, vY + k + 1, vX + 8 * w + k, vX + 8 * w + k + 1, f, f + 1, vY + k, vY + k + 1, sel))
    for w in range(NW):
        if w >= 3: e('s_waitcnt lgkmcnt(%d)' % (2 * (7 - w)))
        for k in range(0, 8, 2): pk(w, k)
    for k in range(8): e('v_mul_f32 v%d, v%d, v%d' % (vY + k, vY + k, vLL))
    for r in range(4): e('v_cvt_pk_bf16_f32 v%d, v%d, v%d' % (vY + 8 + r, vY + r, vY + 4 + r))
    if int(opts.get('x4', 1)):
        D = vY + 8
        e('s_mov_b32 s%d, 0xcccccccc' % sT); e('s_mov_b32 s%d, 0xcccccccc' % sT2)
        for (msk, qp, prs) in (('s[%d:%d]' % (sODD, sODD + 1), '[1,0,3,2]', ((0, 1), (2, 3))), ('s[%d:%d]' % (sT, sT2), '[2,3,0,1]', ((0, 2), (1, 3)))):
            e('s_mov_b64 exec, %s' % msk)
            for x, y in prs: e('v_swap_b32 v%d, v%d' % (D + x, D + y))
            e('s_mov_b64 exec, -1')
            e('s_nop 1')
            for x, y in prs: e('v_mov_b32_dpp v%d, v%d quad_perm:%s row_mask:0xf bank_mask:0xf' % (D + y, D + y, qp))
            e('s_mov_b64 exec, %s' % msk)
            for x, y in prs: e('v_swap_b32 v%d, v%d' % (D + x, D + y))
        e('s_mov_b64 exec, -1')
        e('v_lshlrev_b32 v%d, 4, v0' % vOA)
        if DRY:
            e('s_cmp_eq_u32 s4, 0')
            e('s_cbranch_scc1 L_bar')
        e('buffer_store_dwordx4 v[%d:%d], v%d, s[%d:%d], 0 offen%s' % (D, D + 3, vOA, sOUT, sOUT + 3, (' ' + opts.get('fs', '')).rstrip()))
    else:
        for r in range(4):
            e('buffer_store_dword v%d, v%d, s[%d:%d], 0 offen offset:%d' % (vY + 8 + r, vOA, sOUT, sOUT + 3, 16 * r))
    if STAMP:
        e('s_waitcnt vmcnt(0)')
        stamp()
        e('s_load_dwordx2 s[36:37], s[0:1], 64')
        e('s_lshl_b32 s%d, s2, 3' % sT); e('s_add_u32 s%d, s%d, s%d' % (sT, sT, sWAVE)); e('s_lshl_b32 s%d, s%d, 6' % (sT, sT))
        e('s_waitcnt lgkmcnt(0)')
        e('s_add_u32 s36, s36, s%d' % sT); e('s_addc_u32 s37, s37, 0'); e('s_mov_b32 s38, 64'); e('s_mov_b32 s39, 0x00020000')
        e('v_mov_b32 v1, 0')
        for k in range(nst[0]):
            e('v_mov_b32 v2, s%d' % (64 + 2 * k))
            e('buffer_store_dword v2, v1, s[36:39], 0 offen offset:%d' % (4 * k)); e('s_nop 1')
    g.lab('L_end')
    e('s_endpgm')
    lds = MLB + NW * 256
    out = HDR + '; @launch grid=(256,1,1) block=(512,1,1) lds=%d\n' % lds
    out += '.amdgcn_target "amdgcn-amd-amdhsa--gfx950"\n.text\n.globl %s_kernel\n.p2align 8\n.type %s_kernel,@function\n%s_kernel:\n' % (NAME, NAME, NAME)
    out += '\n'.join(g.l) + '\n'
    out += '''.section .rodata,"a"
.p2align 6
.amdhsa_kernel %s_kernel
  .amdhsa_next_free_vgpr 256
  .amdhsa_next_free_sgpr %d
  .amdhsa_accum_offset 256
  .amdhsa_group_segment_fixed_size 0
  .amdhsa_kernarg_size 72
  .amdhsa_user_sgpr_count 2
  .amdhsa_user_sgpr_kernarg_segment_ptr 1
  .amdhsa_system_sgpr_workgroup_id_x 1
.end_amdhsa_kernel
''' % (NAME, 96 if STAMP else 64)
    return out

if __name__ == '__main__':
    path = sys.argv[1]
    opts = dict(a.split('=') for a in sys.argv[2:])
    opts = {k: v.replace('+', ' ') for k, v in opts.items()}
    open(path, 'w').write(gen(opts))
```

```python
import sys, struct, math
NAME = "standalone__tree_speculative_verify_tree_attention_over_candidate_token_tree__sampling"
HDR = open('cdna_kernels/%s.s.ref' % NAME).read().split('; @launch')[0]
def f32(x): return struct.unpack('<I', struct.pack('<f', x))[0]

class G:
    def __init__(s): s.l = []; s.vm = []
    def e(s, t): s.l.append('    ' + t)
    def c(s, t): s.l.append('    ; ' + t)
    def lab(s, t): s.l.append(t + ':')
    def load(s, t, tag): s.e(t); s.vm.append(tag)
    def wait(s, tags):
        idx = [i for i, t in enumerate(s.vm) if t in tags]
        if not idx: return
        last = max(idx)
        s.e('s_waitcnt vmcnt(%d)' % (len(s.vm) - 1 - last))
        s.vm = s.vm[last + 1:]

def gen(opts):
    NW = 8
    FLK = (' ' + opts.get('fk', '')).rstrip(); FLV = (' ' + opts.get('fv', 'nt')).rstrip()
    PRIO = int(opts.get('prio', 0)); STAMP = int(opts.get('stamp', 0)); GROW = int(opts.get('grow', 1))
    g = G(); e, c = g.e, g.c
    vKOFF = 1; vVOFF = 2; vADD0 = 3; vADD1 = 4; vKOFF1 = 5
    vTS = 6
    vM = [10, 12]; vL = [11, 13]
    vT0 = 14; vT1 = 15
    vQ = 16; vVT = 32; vS = 48; vRING = 176
    slots = [vRING + 16 * i for i in range(4)]
    vTMP = vRING + 64
    vP = vS; vO = vS + 64
    vWA = 1; vMLA = 5; vRA = 3; vRB = 4; vRM = 14; vOA = 15
    sWAVE = 3
    sQ, sK, sV, sKT, sVT, sMK, sOUT = 8, 12, 16, 20, 24, 28, 32
    sPTR = 36
    sC = 52; sPLO = 53; sPHI = 54; s4096 = 55; sOFFK = 56; sOFFV = 57; sT = 58; sT2 = 59; sBIG = 60; sODD = 62
    SCALE = 128 ** -0.5; CEXP = SCALE * math.log2(math.e); BIG = -1e9 / SCALE
    ROW = 528; WSZ = 32 * ROW; MLB = NW * WSZ
    nst = [0]
    def stamp():
        if not STAMP: return
        e('s_memrealtime s[%d:%d]' % (64 + 2 * nst[0], 65 + 2 * nst[0])); e('s_waitcnt lgkmcnt(0)'); nst[0] += 1

    e('s_cmp_ge_u32 s2, 256')
    e('s_cbranch_scc1 L_end')
    stamp()
    e('s_load_dwordx16 s[%d:%d], s[0:1], 0' % (sPTR, sPTR + 15))
    PACE = int(opts.get('pace', 0)); LEAD = int(opts.get('lead', 4 * PACE)); SLP = int(opts.get('slp', 1))
    if PACE: e('s_memrealtime s[4:5]')
    RM = int(opts.get('remap', 0))
    if RM == 1:
        e('s_and_b32 s4, s2, 7'); e('s_lshl_b32 s4, s4, 5'); e('s_lshr_b32 s2, s2, 3'); e('s_or_b32 s2, s2, s4')
    if RM == 2:
        e('s_and_b32 s4, s2, 7'); e('s_lshl_b32 s4, s4, 2'); e('s_bfe_u32 s5, s2, 0x20003'); e('s_or_b32 s4, s4, s5')
        e('s_andn2_b32 s2, s2, 31'); e('s_or_b32 s2, s2, s4')
    e('v_lshrrev_b32 v%d, 6, v0' % vT0)
    e('v_and_b32 v%d, 63, v0' % vT1)
    e('v_readfirstlane_b32 s%d, v%d' % (sWAVE, vT0))
    e('v_lshlrev_b32 v%d, 4, v%d' % (vVOFF, vT1))
    e('v_lshrrev_b32 v22, 4, v%d' % vT1)
    e('v_lshlrev_b32 v23, 4, v22')
    c('K voffsets: slot = 2a+l ; key row = 4*(slot&3) + (slot>>2) ; + ((mu^l)*64) + g*16')
    for ll, dst in ((0, vKOFF), (1, vKOFF1)):
        e('v_and_b32 v20, 14, v%d' % vT1); e('v_or_b32 v20, %d, v20' % ll)
        e('v_and_b32 v21, 3, v20'); e('v_lshlrev_b32 v21, 10, v21'); e('v_bfe_u32 v20, v20, 2, 2'); e('v_lshl_add_u32 v21, v20, 8, v21')
        e('v_and_b32 v20, 1, v%d' % vT1); e('v_xor_b32 v20, %d, v20' % ll); e('v_lshl_add_u32 v21, v20, 6, v21')
        e('v_add_u32 v%d, v21, v23' % dst)
    c('Q voffset (v10) = n*256 + g*16 ; mask voffset (v11) = (n&7)*16 + g*2')
    e('v_and_b32 v20, 15, v%d' % vT1)
    e('v_lshl_add_u32 v10, v20, 8, v23')
    e('v_and_b32 v20, 7, v%d' % vT1)
    e('v_lshlrev_b32 v21, 1, v22')
    e('v_lshl_add_u32 v11, v20, 4, v21')
    e('s_mov_b32 s%d, 0x%08x' % (sC, f32(CEXP)))
    e('s_mov_b32 s%d, 0x05040100' % sPLO)
    e('s_mov_b32 s%d, 0x07060302' % sPHI)
    e('s_mov_b32 s%d, 4096' % s4096)
    e('s_mov_b32 s%d, 0x%08x' % (sBIG, f32(BIG)))
    e('s_mov_b32 s%d, 0xaaaaaaaa' % sODD); e('s_mov_b32 s%d, 0xaaaaaaaa' % (sODD + 1))
    e('s_lshl_b32 s%d, s2, 19' % sT)
    e('s_lshl_b32 s%d, s%d, 12' % (sT2, sWAVE))
    e('s_add_u32 s%d, s%d, s%d' % (sT, sT, sT2))
    ROT = opts.get('rot', '')
    if ROT:
        sh, mul = (int(x) for x in ROT.split(','))
        e('s_lshr_b32 s%d, s2, %d' % (sOFFK, sh))
        e('s_mul_i32 s%d, s%d, %d' % (sOFFK, sOFFK, mul))
        HROT = int(opts.get('hrot', 0))
        if HROT == 1:
            e('s_mul_i32 s%d, s2, 0x9e3779b1' % sOFFK); e('s_lshr_b32 s%d, s%d, 28' % (sOFFK, sOFFK))
        if HROT == 2:
            e('s_lshl_b32 s%d, s2, 3' % sOFFK); e('s_add_u32 s%d, s%d, s%d' % (sOFFK, sOFFK, sWAVE))
            e('s_mul_i32 s%d, s%d, 0x9e3779b1' % (sOFFK, sOFFK)); e('s_lshr_b32 s%d, s%d, 28' % (sOFFK, sOFFK))
        if HROT == 3:
            e('s_mul_i32 s%d, s2, 0x9e3779b1' % sOFFK); e('s_lshr_b32 s%d, s%d, 16' % (sOFFV, sOFFK)); e('s_xor_b32 s%d, s%d, s%d' % (sOFFK, sOFFK, sOFFV))
            e('s_mul_i32 s%d, s%d, 0x85ebca6b' % (sOFFK, sOFFK)); e('s_lshr_b32 s%d, s%d, 28' % (sOFFK, sOFFK))
        if int(opts.get('wrot', 0)):
            e('s_mul_i32 s%d, s%d, %d' % (sOFFV, sWAVE, int(opts['wrot'])))
            e('s_add_u32 s%d, s%d, s%d' % (sOFFK, sOFFK, sOFFV))
        e('s_and_b32 s%d, s%d, 15' % (sOFFK, sOFFK))
        e('s_lshl_b32 s%d, s%d, 15' % (sOFFK, sOFFK))
        e('s_mov_b32 s%d, s%d' % (sOFFV, sOFFK))
    else:
        e('s_mov_b32 s%d, 0' % sOFFK)
        e('s_mov_b32 s%d, 0' % sOFFV)
    e('s_waitcnt lgkmcnt(0)')
    def srd(d, p, off_sgpr, nrec):
        e('s_add_u32 s%d, s%d, s%d' % (d, sPTR + 2 * p, off_sgpr))
        e('s_addc_u32 s%d, s%d, 0' % (d + 1, sPTR + 2 * p + 1))
        e('s_mov_b32 s%d, %d' % (d + 2, nrec))
        e('s_mov_b32 s%d, 0x00020000' % (d + 3))
    STEP = 32768 * int(opts.get('step', 1))
    srd(sK, 1, sT, 524288 - 28672)
    EARLY = int(opts.get('early', 0))
    free = list(slots); unit_slot = {}
    kvo = lambda s: vKOFF1 if (s & 1) else vKOFF
    kio = lambda s: 128 * (s >> 1)
    NU = 33
    def issue_unit(j):
        sl = free.pop(0); unit_slot[j] = sl
        if PRIO in (2, 4) and j == 16: e('s_setprio 0')
        if PRIO == 3 and j == 16: e('s_setprio 1')
        if PRIO == 3 and j == 25: e('s_setprio 0')
        if PRIO == 4 and j == 8: e('s_setprio 2')
        if PRIO == 5 and j in (8, 16, 25): e('s_setprio %d' % {8: 2, 16: 1, 25: 0}[j])
        if PACE and j != 16:
            due = (j if j < 16 else j - 1) * PACE - LEAD
            if due > 0:
                g.lab('L_p%d' % j)
                e('s_memrealtime s[6:7]')
                e('s_waitcnt lgkmcnt(0)')
                e('s_sub_u32 s6, s6, s4')
                e('s_cmp_ge_u32 s6, %d' % due)
                e('s_cbranch_scc1 L_g%d' % j)
                e('s_sleep %d' % SLP)
                e('s_branch L_p%d' % j)
                g.lab('L_g%d' % j)
        if j < 16:
            for s in range(4):
                g.load('buffer_load_dwordx4 v[%d:%d], v%d, s[%d:%d], s%d offen offset:%d%s' %
                       (sl + 4 * s, sl + 4 * s + 3, kvo(s), sK, sK + 3, sOFFK, kio(s), FLK), ('u', j))
            e('s_add_u32 s%d, s%d, %d' % (sOFFK, sOFFK, STEP))
            if ROT: e('s_and_b32 s%d, s%d, 0x7ffff' % (sOFFK, sOFFK))
        elif j == 16:
            for i in range(2):
                g.load('buffer_load_dwordx4 v[%d:%d], v%d, s[%d:%d], 0 offen offset:%d' %
                       (sl + 4 * i, sl + 4 * i + 3, vVOFF, sVT, sVT + 3, 1024 * i), ('u', j))
        else:
            for i in range(4):
                g.load('buffer_load_dwordx4 v[%d:%d], v%d, s[%d:%d], s%d offen offset:%d%s' %
                       (sl + 4 * i, sl + 4 * i + 3, vVOFF, sV, sV + 3, sOFFV, 1024 * i, FLV), ('u', j))
            e('s_add_u32 s%d, s%d, %d' % (sOFFV, sOFFV, STEP))
            if ROT: e('s_and_b32 s%d, s%d, 0x7ffff' % (sOFFV, sOFFV))
    nxt = [0]
    def fill():
        while free and nxt[0] < NU:
            issue_unit(nxt[0]); nxt[0] += 1
    if PRIO: e('s_setprio 3')
    slT = free.pop(0)
    if EARLY: fill()
    srd(sV, 2, sT, 524288 - 28672)
    e('s_lshl_b32 s%d, s2, 13' % sT)
    srd(sQ, 0, sT, 8192)
    srd(sOUT, 6, sT, 8192)
    e('s_lshl_b32 s%d, s2, 11' % sT)
    srd(sKT, 3, sT, 2048)
    srd(sVT, 4, sT, 2048)
    e('s_lshr_b32 s%d, s2, 3' % sT)
    e('s_lshl_b32 s%d, s%d, 7' % (sT, sT))
    srd(sMK, 5, sT, 128)

    c('Q loads')
    for u in range(2):
        for s in range(4):
            r = vQ + (u * 4 + s) * 4
            g.load('buffer_load_dwordx4 v[%d:%d], v10, s[%d:%d], %s offen offset:%d' %
                   (r, r + 3, sQ, sQ + 3, ('s%d' % s4096) if u else '0', 64 * s), 'q')
    c('tree K + mask loads')
    for s in range(4):
        g.load('buffer_load_dwordx4 v[%d:%d], v%d, s[%d:%d], 0 offen offset:%d' %
               (slT + 4 * s, slT + 4 * s + 3, kvo(s), sKT, sKT + 3, kio(s)), 'kt')
    g.load('buffer_load_ushort v%d, v11, s[%d:%d], 0 offen' % (vADD0, sMK, sMK + 3), 'mk')
    g.load('buffer_load_ushort v%d, v11, s[%d:%d], 0 offen offset:8' % (vADD1, sMK, sMK + 3), 'mk')
    if int(opts.get('vpre', 0)):
        g.load('buffer_load_dword v%d, off, s[%d:%d], 0' % (vT0, sV, sV + 3), 'mk')
    fill()
    def mf(d, a, b, cc, k16=False):
        if k16: e('v_mfma_f32_16x16x16_bf16 v[%d:%d], v[%d:%d], v[%d:%d], %s' % (d, d + 3, a, a + 1, b, b + 1, cc))
        else: e('v_mfma_f32_16x16x32_bf16 v[%d:%d], v[%d:%d], v[%d:%d], %s' % (d, d + 3, a, a + 3, b, b + 3, cc))
    acc = lambda d: 'v[%d:%d]' % (d, d + 3)
    def qk(sl, dst, tmp):
        e('s_mov_b64 exec, s[%d:%d]' % (sODD, sODD + 1))
        for h in range(2):
            for k in range(4):
                e('v_swap_b32 v%d, v%d' % (sl + 8 * h + k, sl + 8 * h + 4 + k))
        e('s_mov_b64 exec, -1')
        e('s_nop 1')
        for u in range(2):
            for x in range(2):
                d = dst[u] if x == 0 else tmp[u]
                for h in range(2):
                    s = 2 * h + x
                    mf(d, sl + 4 * s, vQ + (u * 4 + s) * 4, '0' if h == 0 else acc(d))
    def qk_fix(dst, tmp, rs=range(4)):
        for u in range(2):
            for r in rs:
                e('v_add_f32 v%d, v%d, v%d' % (dst[u] + r, dst[u] + r, tmp[u] + (r ^ 1)))
    vTT = vS + 7 * 16
    def tree_qk():
        c('tree QK')
        g.wait(['q', 'kt', 'mk'])
        qk(slT, [vTT, vTT + 4], [vTT + 8, vTT + 12])
        free.append(slT); fill()
        c('mask term: add = (1 - mask) * (-1e9/scale) ; waves != 0 -> -inf')
        e('v_lshlrev_b32 v%d, 16, v%d' % (vADD0, vADD0))
        e('v_lshlrev_b32 v%d, 16, v%d' % (vADD1, vADD1))
        e('v_sub_f32 v%d, 1.0, v%d' % (vADD0, vADD0))
        e('v_sub_f32 v%d, 1.0, v%d' % (vADD1, vADD1))
        e('v_mul_f32 v%d, s%d, v%d' % (vADD0, sBIG, vADD0))
        e('v_mul_f32 v%d, s%d, v%d' % (vADD1, sBIG, vADD1))
        e('s_cmp_eq_u32 s%d, 0' % sWAVE)
        e('s_cbranch_scc1 L_w0')
        e('v_mov_b32 v%d, 0xff800000' % vADD0)
        e('v_mov_b32 v%d, 0xff800000' % vADD1)
        g.lab('L_w0')
        e('s_nop 4')
        qk_fix([vTT, vTT + 4], [vTT + 8, vTT + 12], range(2))
        e('v_add_f32 v%d, v%d, v%d' % (vTS + 0, vTT + 0, vADD0))
        e('v_add_f32 v%d, v%d, v%d' % (vTS + 1, vTT + 1, vADD1))
        e('v_add_f32 v%d, v%d, v%d' % (vTS + 2, vTT + 4, vADD0))
        e('v_add_f32 v%d, v%d, v%d' % (vTS + 3, vTT + 5, vADD1))

    stamp()
    g.wait(['q'])
    stamp()
    if not EARLY: tree_qk()
    c('K phase')
    for t in range(16):
        b, tau = t // 2, t % 2
        g.wait([('u', t)])
        sl = unit_slot[t]
        dst = [vS + b * 16 + u * 8 + tau * 4 for u in range(2)]
        tmp = [vTMP + (t % 2) * 8 + u * 4 for u in range(2)]
        qk(sl, dst, tmp)
        if t > 0: qk_fix(*prev)
        prev = (dst, tmp)
        free.append(sl)
        if t == 15: free.append(vQ)
        if PRIO == 1 and t == 7: e('s_setprio 2')
        if PRIO == 1 and t == 15: e('s_setprio 1')
        fill()
        if EARLY and t == 2: tree_qk()
    stamp()
    c('softmax: max')
    e('s_nop 7')
    qk_fix(*prev)
    free.append(vTMP); fill()
    for u in range(2):
        vals = [vS + b * 16 + u * 8 + k for b in range(8) for k in range(8)] + [vTS + 2 * u, vTS + 2 * u + 1]
        e('v_max_f32 v%d, v%d, v%d' % (vM[u], vals[0], vals[1]))
        for k in range(2, len(vals), 2):
            e('v_max3_f32 v%d, v%d, v%d, v%d' % (vM[u], vM[u], vals[k], vals[k + 1]))
    def xreduce(regs, op):
        tmps = [vT0, vT1]
        for sw in ('v_permlane16_swap_b32', 'v_permlane32_swap_b32'):
            for r, t in zip(regs, tmps): e('v_mov_b32 v%d, v%d' % (t, r))
            e('s_nop 1')
            for r, t in zip(regs, tmps): e('%s v%d, v%d' % (sw, r, t))
            e('s_nop 1')
            for r, t in zip(regs, tmps): e('%s v%d, v%d, v%d' % (op, r, r, t))
    xreduce(vM, 'v_max_f32')
    c('softmax: exp / sum / pack')
    vMC = [vVT, vVT + 1]; vL2 = [vVT + 2, vVT + 3]
    for u in range(2):
        e('v_mul_f32 v%d, s%d, v%d' % (vMC[u], sC, vM[u]))
        e('v_mov_b32 v%d, 0' % vL[u])
    for u in range(2):
        for k in range(2):
            r = vTS + 2 * u + k
            e('v_fma_f32 v%d, v%d, s%d, -v%d' % (r, r, sC, vMC[u]))
    for r in range(vTS, vTS + 4): e('v_exp_f32 v%d, v%d' % (r, r))
    e('s_nop 0')
    for u in range(2): e('v_add_f32 v%d, v%d, v%d' % (vL2[u], vTS + 2 * u, vTS + 2 * u + 1))
    e('v_cvt_pk_bf16_f32 v%d, v%d, v%d' % (vTS, vTS, vTS + 1))
    e('v_mov_b32 v%d, 0' % (vTS + 1))
    e('v_cvt_pk_bf16_f32 v%d, v%d, v%d' % (vTS + 2, vTS + 2, vTS + 3))
    e('v_mov_b32 v%d, 0' % (vTS + 3))
    for b in range(8):
        for u in range(2):
            base = vS + b * 16 + u * 8
            for k in range(8): e('v_fma_f32 v%d, v%d, s%d, -v%d' % (base + k, base + k, sC, vMC[u]))
            for k in range(8): e('v_exp_f32 v%d, v%d' % (base + k, base + k))
            for k in range(0, 8, 2):
                e('v_add_f32 v%d, v%d, v%d' % (vL[u], vL[u], base + k))
                e('v_add_f32 v%d, v%d, v%d' % (vL2[u], vL2[u], base + k + 1))
            for k in range(4):
                e('v_cvt_pk_bf16_f32 v%d, v%d, v%d' % (vP + b * 8 + u * 4 + k, base + 2 * k, base + 2 * k + 1))
    for u in range(2): e('v_add_f32 v%d, v%d, v%d' % (vL[u], vL[u], vL2[u]))
    xreduce(vL, 'v_add_f32')
    c('LDS / output addresses; publish (m,l)')
    a0, a1, a2 = vVT, vVT + 1, vVT + 2
    e('v_lshrrev_b32 v%d, 4, v%d' % (a0, vVOFF))
    e('v_and_b32 v%d, 15, v%d' % (a1, a0))
    e('v_lshrrev_b32 v%d, 4, v%d' % (a2, a0))
    e('v_mul_u32_u24 v%d, %d, v%d' % (vWA, ROW, a1))
    e('v_lshl_add_u32 v%d, v%d, 7, v%d' % (vWA, a2, vWA))
    e('s_mul_i32 s%d, s%d, %d' % (sT, sWAVE, WSZ))
    e('v_add_u32 v%d, s%d, v%d' % (vWA, sT, vWA))
    e('s_lshl_b32 s%d, s%d, 8' % (sT, sWAVE))
    e('s_add_u32 s%d, s%d, %d' % (sT, sT, MLB))
    e('v_lshlrev_b32 v%d, 3, v%d' % (vMLA, a1))
    e('v_add_u32 v%d, s%d, v%d' % (vMLA, sT, vMLA))
    for u in range(2):
        e('ds_write_b64 v%d, v[%d:%d] offset:%d' % (vMLA, vM[u], vL[u], u * 128))
    e('v_lshrrev_b32 v%d, 4, v0' % a0)
    e('v_and_b32 v%d, 15, v0' % a1)
    e('v_mul_u32_u24 v%d, %d, v%d' % (vRA, ROW, a0))
    e('v_lshl_add_u32 v%d, v%d, 5, v%d' % (vRA, a1, vRA))
    e('v_add_u32 v%d, %d, v%d' % (vRB, 4 * WSZ, vRA))
    e('v_lshlrev_b32 v%d, 3, v%d' % (vRM, a0))
    e('v_add_u32 v%d, %d, v%d' % (vRM, MLB, vRM))
    e('v_lshlrev_b32 v%d, 8, v%d' % (vOA, a0))
    e('v_lshrrev_b32 v%d, 2, v%d' % (a2, a1))
    e('v_lshl_add_u32 v%d, v%d, 6, v%d' % (vOA, a2, vOA))
    e('v_and_b32 v%d, 3, v%d' % (a2, a1))
    e('v_lshl_add_u32 v%d, v%d, 2, v%d' % (vOA, a2, vOA))
    stamp()
    c('tree PV (initialises O)')
    g.wait([('u', 16)])
    sa = unit_slot[16]
    for cc in range(4):
        tb = vVT + (cc % 2) * 8
        e('v_perm_b32 v%d, v%d, v%d, s%d' % (tb, sa + 4 + cc, sa + cc, sPLO))
        e('v_mov_b32 v%d, 0' % (tb + 1))
        e('v_perm_b32 v%d, v%d, v%d, s%d' % (tb + 2, sa + 4 + cc, sa + cc, sPHI))
        e('v_mov_b32 v%d, 0' % (tb + 3))
        e('s_nop 1')
        for h in range(2):
            for u in range(2):
                mf(vO + ((2 * cc + h) * 2 + u) * 4, tb + 2 * h, vTS + 2 * u, '0', k16=True)
    free.append(sa); fill()
    c('V phase')
    def owrite(cc):
        for h in range(2):
            for u in range(2):
                j = 2 * cc + h; d = vO + (j * 2 + u) * 4
                e('ds_write_b128 v%d, v[%d:%d] offset:%d' % (vWA, d, d + 3, u * 16 * ROW + j * 16))
    for b in range(8):
        g.wait([('u', 17 + 2 * b), ('u', 18 + 2 * b)])
        sa, sb = unit_slot[17 + 2 * b], unit_slot[18 + 2 * b]
        rows = [sa + 4 * i for i in range(4)] + [sb + 4 * i for i in range(4)]
        for cc in range(4):
            tb = vVT + (cc % 2) * 8
            for p in range(4):
                e('v_perm_b32 v%d, v%d, v%d, s%d' % (tb + p, rows[2 * p + 1] + cc, rows[2 * p] + cc, sPLO))
            for p in range(4):
                e('v_perm_b32 v%d, v%d, v%d, s%d' % (tb + 4 + p, rows[2 * p + 1] + cc, rows[2 * p] + cc, sPHI))
            if b == 7 and cc > 0: owrite(cc - 1)
            for h in range(2):
                for u in range(2):
                    d = vO + ((2 * cc + h) * 2 + u) * 4
                    mf(d, tb + 4 * h, vP + b * 8 + u * 4, acc(d))
        free.append(sa); free.append(sb)
        if PRIO == 1 and b == 3: e('s_setprio 0')
        if GROW and b % 2 == 1: free.append(vP + (b - 1) * 8)
        fill()
    stamp()
    c('combine through LDS')
    e('s_nop 7')
    owrite(3)
    e('s_waitcnt lgkmcnt(0)')
    stamp()
    e('s_barrier')
    stamp()
    vR = 16; vX = 32; vF = vRING; vMM = vRING + 8; vLL = vRING + 9; vY = vRING + 16
    def rdp(w):
        base = vRA if w < 4 else vRB; off = (w % 4) * WSZ
        e('ds_read_b128 v[%d:%d], v%d offset:%d' % (vX + 8 * w, vX + 8 * w + 3, base, off))
        e('ds_read_b128 v[%d:%d], v%d offset:%d' % (vX + 8 * w + 4, vX + 8 * w + 7, base, off + 16))
    for w in range(NW): e('ds_read_b64 v[%d:%d], v%d offset:%d' % (vR + 2 * w, vR + 2 * w + 1, vRM, w * 256))
    for w in range(3): rdp(w)
    e('s_waitcnt lgkmcnt(6)')
    for w in range(3, 7): rdp(w)
    e('v_max_f32 v%d, v%d, v%d' % (vMM, vR, vR + 2))
    for w in range(2, NW, 2): e('v_max3_f32 v%d, v%d, v%d, v%d' % (vMM, vMM, vR + 2 * w, vR + 2 * w + 2))
    e('v_mul_f32 v%d, s%d, v%d' % (vMM, sC, vMM))
    for w in range(NW): e('v_fma_f32 v%d, v%d, s%d, -v%d' % (vF + w, vR + 2 * w, sC, vMM))
    for w in range(NW): e('v_exp_f32 v%d, v%d' % (vF + w, vF + w))
    e('s_nop 0')
    e('v_mul_f32 v%d, v%d, v%d' % (vLL, vF, vR + 1))
    for w in range(1, NW): e('v_fma_f32 v%d, v%d, v%d, v%d' % (vLL, vF + w, vR + 2 * w + 1, vLL))
    e('v_rcp_f32 v%d, v%d' % (vLL, vLL))
    e('s_waitcnt lgkmcnt(8)')
    rdp(7)
    def pk(w, k):
        f = vF + (w & ~1)
        sel = 'op_sel:[0,1,0] op_sel_hi:[1,1,1]' if (w & 1) else 'op_sel_hi:[1,0,1]'
        if w == 0:
            e('v_pk_mul_f32 v[%d:%d], v[%d:%d], v[%d:%d] op_sel_hi:[1,0]' % (vY + k, vY + k + 1, vX + k, vX + k + 1, f, f + 1))
        else:
            e('v_pk_fma_f32 v[%d:%d], v[%d:%d], v[%d:%d], v[%d:%d] %s' % (vY + k, vY + k + 1, vX + 8 * w + k, vX + 8 * w + k + 1, f, f + 1, vY + k, vY + k + 1, sel))
    for w in range(NW):
        if w >= 3: e('s_waitcnt lgkmcnt(%d)' % (2 * (7 - w)))
        for k in range(0, 8, 2): pk(w, k)
    for k in range(8): e('v_mul_f32 v%d, v%d, v%d' % (vY + k, vY + k, vLL))
    for r in range(4): e('v_cvt_pk_bf16_f32 v%d, v%d, v%d' % (vY + 8 + r, vY + r, vY + 4 + r))
    if int(opts.get('x4', 1)):
        D = vY + 8
        e('s_mov_b32 s%d, 0xcccccccc' % sT); e('s_mov_b32 s%d, 0xcccccccc' % sT2)
        for (msk, qp, prs) in (('s[%d:%d]' % (sODD, sODD + 1), '[1,0,3,2]', ((0, 1), (2, 3))), ('s[%d:%d]' % (sT, sT2), '[2,3,0,1]', ((0, 2), (1, 3)))):
            e('s_mov_b64 exec, %s' % msk)
            for x, y in prs: e('v_swap_b32 v%d, v%d' % (D + x, D + y))
            e('s_mov_b64 exec, -1')
            e('s_nop 1')
            for x, y in prs: e('v_mov_b32_dpp v%d, v%d quad_perm:%s row_mask:0xf bank_mask:0xf' % (D + y, D + y, qp))
            e('s_mov_b64 exec, %s' % msk)
            for x, y in prs: e('v_swap_b32 v%d, v%d' % (D + x, D + y))
        e('s_mov_b64 exec, -1')
        e('v_lshlrev_b32 v%d, 4, v0' % vOA)
        e('buffer_store_dwordx4 v[%d:%d], v%d, s[%d:%d], 0 offen%s' % (D, D + 3, vOA, sOUT, sOUT + 3, (' ' + opts.get('fs', '')).rstrip()))
    else:
        for r in range(4):
            e('buffer_store_dword v%d, v%d, s[%d:%d], 0 offen offset:%d' % (vY + 8 + r, vOA, sOUT, sOUT + 3, 16 * r))
    if STAMP:
        e('s_waitcnt vmcnt(0)')
        stamp()
        e('s_load_dwordx2 s[36:37], s[0:1], 64')
        e('s_lshl_b32 s%d, s2, 3' % sT); e('s_add_u32 s%d, s%d, s%d' % (sT, sT, sWAVE)); e('s_lshl_b32 s%d, s%d, 6' % (sT, sT))
        e('s_waitcnt lgkmcnt(0)')
        e('s_add_u32 s36, s36, s%d' % sT); e('s_addc_u32 s37, s37, 0'); e('s_mov_b32 s38, 64'); e('s_mov_b32 s39, 0x00020000')
        e('v_mov_b32 v1, 0')
        for k in range(nst[0]):
            e('v_mov_b32 v2, s%d' % (64 + 2 * k))
            e('buffer_store_dword v2, v1, s[36:39], 0 offen offset:%d' % (4 * k)); e('s_nop 1')
    g.lab('L_end')
    e('s_endpgm')
    lds = MLB + NW * 256
    out = HDR + '; @launch grid=(256,1,1) block=(512,1,1) lds=%d\n' % lds
    out += '.amdgcn_target "amdgcn-amd-amdhsa--gfx950"\n.text\n.globl %s_kernel\n.p2align 8\n.type %s_kernel,@function\n%s_kernel:\n' % (NAME, NAME, NAME)
    out += '\n'.join(g.l) + '\n'
    out += '''.section .rodata,"a"
.p2align 6
.amdhsa_kernel %s_kernel
  .amdhsa_next_free_vgpr 256
  .amdhsa_next_free_sgpr %d
  .amdhsa_accum_offset 256
  .amdhsa_group_segment_fixed_size 0
  .amdhsa_kernarg_size 72
  .amdhsa_user_sgpr_count 2
  .amdhsa_user_sgpr_kernarg_segment_ptr 1
  .amdhsa_system_sgpr_workgroup_id_x 1
.end_amdhsa_kernel
''' % (NAME, 96 if STAMP else 64)
    return out

if __name__ == '__main__':
    path = sys.argv[1]
    opts = dict(a.split('=') for a in sys.argv[2:])
    opts = {k: v.replace('+', ' ') for k, v in opts.items()}
    open(path, 'w').write(gen(opts))
```

```python
import sys, struct, math
NAME = "standalone__tree_speculative_verify_tree_attention_over_candidate_token_tree__sampling"
HDR = open('cdna_kernels/%s.s.ref' % NAME).read().split('; @launch')[0]
def f32(x): return struct.unpack('<I', struct.pack('<f', x))[0]

class G:
    def __init__(s): s.l = []; s.vm = []
    def e(s, t): s.l.append('    ' + t)
    def c(s, t): s.l.append('    ; ' + t)
    def lab(s, t): s.l.append(t + ':')
    def load(s, t, tag): s.e(t); s.vm.append(tag)
    def wait(s, tags):
        idx = [i for i, t in enumerate(s.vm) if t in tags]
        if not idx: return
        last = max(idx)
        s.e('s_waitcnt vmcnt(%d)' % (len(s.vm) - 1 - last))
        s.vm = s.vm[last + 1:]

def gen(opts):
    NW = 8
    FLK = (' ' + opts.get('fk', '')).rstrip(); FLV = (' ' + opts.get('fv', 'nt')).rstrip()
    PRIO = int(opts.get('prio', 0)); STAMP = int(opts.get('stamp', 0)); GROW = int(opts.get('grow', 1))
    g = G(); e, c = g.e, g.c
    vKOFF = 1; vVOFF = 2; vADD0 = 3; vADD1 = 4; vKOFF1 = 5
    vTS = 6
    vM = [10, 12]; vL = [11, 13]
    vT0 = 14; vT1 = 15
    vQ = 16; vVT = 32; vS = 48; vRING = 176
    slots = [vRING + 16 * i for i in range(4)]
    vTMP = vRING + 64
    vP = vS; vO = vS + 64
    vWA = 1; vMLA = 5; vRA = 3; vRB = 4; vRM = 14; vOA = 15
    sWAVE = 3
    sQ, sK, sV, sKT, sVT, sMK, sOUT = 8, 12, 16, 20, 24, 28, 32
    sPTR = 36
    sC = 52; sPLO = 53; sPHI = 54; s4096 = 55; sOFFK = 56; sOFFV = 57; sT = 58; sT2 = 59; sBIG = 60; sODD = 62
    SCALE = 128 ** -0.5; CEXP = SCALE * math.log2(math.e); BIG = -1e9 / SCALE
    ROW = 528; WSZ = 32 * ROW; MLB = NW * WSZ
    nst = [0]
    def stamp():
        if not STAMP: return
        e('s_memrealtime s[%d:%d]' % (64 + 2 * nst[0], 65 + 2 * nst[0])); e('s_waitcnt lgkmcnt(0)'); nst[0] += 1

    FAST = int(opts.get('fast', 0)); DRY = int(opts.get('dry', 0))
    if FAST:
        PACE = 0; LAT = 0; ROT = '0,0'; WP = None; RP = [8, 9, 10, 11]; WB = 12; WMAX = 7 << 12; cnt = {}
        e('s_cmpk_ge_u32 s2, 0x100')
        e('s_cbranch_scc1 L_end')
        stamp()
        e('s_load_dwordx16 s[%d:%d], s[0:1], 0' % (sPTR, sPTR + 15))
        e('v_lshrrev_b32 v%d, 6, v0' % vT0)
        e('v_bfe_u32 v22, v0, 4, 2')
        e('v_readfirstlane_b32 s%d, v%d' % (sWAVE, vT0))
        e('v_lshlrev_b32 v23, 4, v22')
        e('v_and_b32 v20, 15, v0')
        e('v_lshl_add_u32 v10, v20, 8, v23')
        e('v_and_b32 v20, 13, v0')
        e('v_lshl_add_u32 v%d, v20, 6, v23' % vKOFF)
        e('v_and_b32 v20, 2, v0')
        e('v_lshl_add_u32 v%d, v20, 10, v%d' % (vKOFF, vKOFF))
        e('v_xor_b32 v%d, 0x440, v%d' % (vKOFF1, vKOFF))
        e('s_lshl_b32 s%d, s2, 19' % sT)
        e('s_lshl_b32 s4, s%d, 12' % sWAVE)
        e('s_add_u32 s%d, s%d, s4' % (sT, sT))
        e('s_lshl_b32 s%d, s%d, 16' % (sOFFK, sWAVE))
        e('s_lshl_b32 s%d, s2, 13' % sT2)
        e('s_movk_i32 s%d, 0x1000' % s4096)
        e('s_movk_i32 s%d, 0x2000' % (sQ + 2))
        e('s_mov_b32 s%d, 0x00020000' % (sQ + 3))
        e('s_mov_b32 s%d, %d' % (sK + 2, 524288 - WMAX))
        e('s_mov_b32 s%d, s%d' % (sK + 3, sQ + 3))
        e('s_waitcnt lgkmcnt(0)')
        e('s_add_u32 s%d, s%d, s%d' % (sQ, sPTR, sT2)); e('s_addc_u32 s%d, s%d, 0' % (sQ + 1, sPTR + 1))
        e('s_add_u32 s%d, s%d, s%d' % (sK, sPTR + 2, sT)); e('s_addc_u32 s%d, s%d, 0' % (sK + 1, sPTR + 3))
    else:
        e('s_cmp_ge_u32 s2, 256')
        e('s_cbranch_scc1 L_end')
        stamp()
        e('s_load_dwordx16 s[%d:%d], s[0:1], 0' % (sPTR, sPTR + 15))
        PACE = int(opts.get('pace', 0)); LEAD = int(opts.get('lead', 4 * PACE)); SLP = int(opts.get('slp', 1))
        if PACE: e('s_memrealtime s[4:5]')
        RM = int(opts.get('remap', 0))
        if RM == 1:
            e('s_and_b32 s4, s2, 7'); e('s_lshl_b32 s4, s4, 5'); e('s_lshr_b32 s2, s2, 3'); e('s_or_b32 s2, s2, s4')
        if RM == 2:
            e('s_and_b32 s4, s2, 7'); e('s_lshl_b32 s4, s4, 2'); e('s_bfe_u32 s5, s2, 0x20003'); e('s_or_b32 s4, s4, s5')
            e('s_andn2_b32 s2, s2, 31'); e('s_or_b32 s2, s2, s4')
        e('v_lshrrev_b32 v%d, 6, v0' % vT0)
        e('v_and_b32 v%d, 63, v0' % vT1)
        e('v_readfirstlane_b32 s%d, v%d' % (sWAVE, vT0))
        WP = [int(x) for x in opts['wp'].split(',')] if 'wp' in opts else None
        RP = [b for b in range(8, 15) if b not in WP] if WP else [8, 9, 10, 11]
        vKT = [48, 49]
        e('v_lshlrev_b32 v%d, 4, v%d' % (vVOFF, vT1))
        e('v_lshrrev_b32 v22, 4, v%d' % vT1)
        if WP:
            e('v_and_b32 v%d, 0xff, v%d' % (vVOFF, vVOFF))
            for j in range(2):
                e('v_bfe_u32 v20, v22, %d, 1' % j); e('v_lshl_add_u32 v%d, v20, %d, v%d' % (vVOFF, RP[j], vVOFF))
        e('v_lshlrev_b32 v23, 4, v22')
        c('K voffsets: slot = 2a+l ; key row = 4*(slot&3) + (slot>>2) ; + ((mu^l)*64) + g*16')
        for ll, dst in ((0, vKOFF), (1, vKOFF1)):
            e('v_and_b32 v20, 14, v%d' % vT1); e('v_or_b32 v20, %d, v20' % ll)
            e('v_and_b32 v21, 3, v20'); e('v_lshlrev_b32 v21, 10, v21'); e('v_bfe_u32 v20, v20, 2, 2'); e('v_lshl_add_u32 v21, v20, 8, v21')
            e('v_and_b32 v20, 1, v%d' % vT1); e('v_xor_b32 v20, %d, v20' % ll); e('v_lshl_add_u32 v21, v20, 6, v21')
            e('v_add_u32 v%d, v21, v23' % dst)
            if WP:
                e('v_mov_b32 v%d, v%d' % (vKT[ll], dst))
                e('v_and_b32 v%d, 0xff, v%d' % (dst, dst))
                for j in range(4):
                    e('v_bfe_u32 v20, v%d, %d, 1' % (vKT[ll], 8 + j)); e('v_lshl_add_u32 v%d, v20, %d, v%d' % (dst, RP[j], dst))
        c('Q voffset (v10) = n*256 + g*16 ; mask voffset (v11) = (n&7)*16 + g*2')
        e('v_and_b32 v20, 15, v%d' % vT1)
        e('v_lshl_add_u32 v10, v20, 8, v23')
        e('v_and_b32 v20, 7, v%d' % vT1)
        e('v_lshlrev_b32 v21, 1, v22')
        e('v_lshl_add_u32 v11, v20, 4, v21')
        e('s_mov_b32 s%d, 0x%08x' % (sC, f32(CEXP)))
        e('s_mov_b32 s%d, 0x05040100' % sPLO)
        e('s_mov_b32 s%d, 0x07060302' % sPHI)
        e('s_mov_b32 s%d, 4096' % s4096)
        e('s_mov_b32 s%d, 0x%08x' % (sBIG, f32(BIG)))
        e('s_mov_b32 s%d, 0xaaaaaaaa' % sODD); e('s_mov_b32 s%d, 0xaaaaaaaa' % (sODD + 1))
        e('s_lshl_b32 s%d, s2, 19' % sT)
        WB = int(opts.get('wb', 12))
        if WP:
            e('s_mov_b32 s%d, 0' % sT2)
            for j in range(3):
                e('s_bfe_u32 s4, s%d, 0x%x' % (sWAVE, 0x10000 | j)); e('s_lshl_b32 s4, s4, %d' % WP[j]); e('s_or_b32 s%d, s%d, s4' % (sT2, sT2))
        else:
            e('s_lshl_b32 s%d, s%d, %d' % (sT2, sWAVE, WB))
        if 'wx' in opts:
            e('s_bfe_u32 s4, s2, 0x%x' % (0x10000 | int(opts['wx']))); e('s_lshl_b32 s4, s4, %d' % (WP[2] if WP else 14)); e('s_xor_b32 s%d, s%d, s4' % (sT2, sT2))
        WMAX = sum(1 << x for x in WP) if WP else 7 << WB
        tbits = [b for b in range(12, 19) if not WB <= b < WB + 3]
        if opts.get('tord'): tbits = [tbits[int(ch)] for ch in opts['tord']]
        dep = lambda t: sum(((t >> i) & 1) << b for i, b in enumerate(tbits))
        cnt = {}
        LAT = int(opts.get('lat', 0))
        if not LAT: e('s_add_u32 s%d, s%d, s%d' % (sT, sT, sT2))
        ROT = opts.get('rot', '')
        if ROT:
            sh, mul = (int(x) for x in ROT.split(','))
            e('s_lshr_b32 s%d, s2, %d' % (sOFFK, sh))
            e('s_mul_i32 s%d, s%d, %d' % (sOFFK, sOFFK, mul))
            HROT = int(opts.get('hrot', 0))
            if HROT == 1:
                e('s_mul_i32 s%d, s2, 0x9e3779b1' % sOFFK); e('s_lshr_b32 s%d, s%d, 28' % (sOFFK, sOFFK))
            if HROT == 2:
                e('s_lshl_b32 s%d, s2, 3' % sOFFK); e('s_add_u32 s%d, s%d, s%d' % (sOFFK, sOFFK, sWAVE))
                e('s_mul_i32 s%d, s%d, 0x9e3779b1' % (sOFFK, sOFFK)); e('s_lshr_b32 s%d, s%d, 28' % (sOFFK, sOFFK))
            if HROT == 3:
                e('s_mul_i32 s%d, s2, 0x9e3779b1' % sOFFK); e('s_lshr_b32 s%d, s%d, 16' % (sOFFV, sOFFK)); e('s_xor_b32 s%d, s%d, s%d' % (sOFFK, sOFFK, sOFFV))
                e('s_mul_i32 s%d, s%d, 0x85ebca6b' % (sOFFK, sOFFK)); e('s_lshr_b32 s%d, s%d, 28' % (sOFFK, sOFFK))
            if int(opts.get('wrot', 0)):
                e('s_mul_i32 s%d, s%d, %d' % (sOFFV, sWAVE, int(opts['wrot'])))
                e('s_add_u32 s%d, s%d, s%d' % (sOFFK, sOFFK, sOFFV))
            e('s_and_b32 s%d, s%d, 15' % (sOFFK, sOFFK))
            if LAT:
                e('s_mul_i32 s5, s%d, %d' % (sOFFK, LAT)); e('s_add_u32 s5, s5, s%d' % sWAVE); e('s_and_b32 s5, s5, 7'); e('s_lshl_b32 s5, s5, 12')
                e('s_lshl_b32 s4, s%d, 15' % sOFFK); e('s_mov_b32 s6, s4'); e('s_mov_b32 s7, s5')
                e('s_or_b32 s%d, s4, s5' % sOFFK)
            else:
                e('s_lshl_b32 s%d, s%d, 15' % (sOFFK, sOFFK))
            e('s_mov_b32 s%d, s%d' % (sOFFV, sOFFK))
        else:
            e('s_mov_b32 s%d, 0' % sOFFK)
            e('s_mov_b32 s%d, 0' % sOFFV)
        e('s_waitcnt lgkmcnt(0)')
    def srd(d, p, off_sgpr, nrec):
        e('s_add_u32 s%d, s%d, s%d' % (d, sPTR + 2 * p, off_sgpr))
        e('s_addc_u32 s%d, s%d, 0' % (d + 1, sPTR + 2 * p + 1))
        e('s_mov_b32 s%d, %d' % (d + 2, nrec))
        e('s_mov_b32 s%d, 0x00020000' % (d + 3))
    STEP = 32768 * int(opts.get('step', 1))
    if not FAST: srd(sK, 1, sT, 524288 if LAT else 524288 - WMAX)
    EARLY = int(opts.get('early', 0))
    free = list(slots); unit_slot = {}
    kvo = lambda s: vKOFF1 if (s & 1) else vKOFF
    kio = lambda s: 128 * (s >> 1)
    NU = 33
    def adv(so, a):
        if WB != 12 or opts.get('tord'):
            cnt[so] = cnt.get(so, 0) + 1
            e('s_mov_b32 s%d, %d' % (so, dep(cnt[so] & 15)))
        elif LAT:
            e('s_add_u32 s%d, s%d, 32768' % (a, a)); e('s_and_b32 s%d, s%d, 0x7ffff' % (a, a))
            e('s_add_u32 s%d, s%d, %d' % (a + 1, a + 1, 4096 * LAT)); e('s_and_b32 s%d, s%d, 0x7fff' % (a + 1, a + 1))
            e('s_or_b32 s%d, s%d, s%d' % (so, a, a + 1))
        else:
            e('s_add_u32 s%d, s%d, %d' % (so, so, STEP))
            if ROT: e('s_and_b32 s%d, s%d, 0x7ffff' % (so, so))
    def issue_unit(j):
        sl = free.pop(0); unit_slot[j] = sl
        if PRIO == 9:
            pm = dict((int(x.split(':')[0]), int(x.split(':')[1])) for x in opts['pm'].split(','))
            if j in pm: e('s_setprio %d' % pm[j])
        if PRIO in (2, 4) and j == 16: e('s_setprio 0')
        if PRIO == 3 and j == 16: e('s_setprio 1')
        if PRIO == 3 and j == 25: e('s_setprio 0')
        if PRIO == 4 and j == 8: e('s_setprio 2')
        if PRIO == 5 and j in (8, 16, 25): e('s_setprio %d' % {8: 2, 16: 1, 25: 0}[j])
        if PACE and j != 16:
            due = (j if j < 16 else j - 1) * PACE - LEAD
            if due > 0:
                g.lab('L_p%d' % j)
                e('s_memrealtime s[6:7]')
                e('s_waitcnt lgkmcnt(0)')
                e('s_sub_u32 s6, s6, s4')
                e('s_cmp_ge_u32 s6, %d' % due)
                e('s_cbranch_scc1 L_g%d' % j)
                e('s_sleep %d' % SLP)
                e('s_branch L_p%d' % j)
                g.lab('L_g%d' % j)
        if j < 16:
            for s in range(4):
                g.load('buffer_load_dwordx4 v[%d:%d], v%d, s[%d:%d], s%d offen offset:%d%s' %
                       (sl + 4 * s, sl + 4 * s + 3, kvo(s), sK, sK + 3, sOFFK, kio(s), FLK), ('u', j))
            adv(sOFFK, 4)
        elif j == 16:
            va = vVOFF
            if WP:
                va = sl + 15
                e('v_and_b32 v%d, 63, v0' % va); e('v_lshlrev_b32 v%d, 4, v%d' % (va, va))
            for i in range(2):
                g.load('buffer_load_dwordx4 v[%d:%d], v%d, s[%d:%d], 0 offen offset:%d' %
                       (sl + 4 * i, sl + 4 * i + 3, va, sVT, sVT + 3, 1024 * i), ('u', j))
        else:
            if RP[3] > 11: e('s_add_u32 s5, s%d, %d' % (sOFFV, 1 << RP[3]))
            for i in range(4):
                so, io = sOFFV, ((i & 1) << RP[2]) + ((i >> 1) << RP[3])
                if RP[3] > 11 and i >> 1: so, io = 5, (i & 1) << RP[2]
                assert io < 4096
                g.load('buffer_load_dwordx4 v[%d:%d], v%d, s[%d:%d], s%d offen offset:%d%s' %
                       (sl + 4 * i, sl + 4 * i + 3, vVOFF, sV, sV + 3, so, io, FLV), ('u', j))
            adv(sOFFV, 6)
    nxt = [0]; done = [0]; DK = int(opts.get('dk', 99)); DV = int(opts.get('dv', 99))
    def fill():
        while free and nxt[0] < NU and nxt[0] - done[0] < (DK if nxt[0] < 16 else DV):
            issue_unit(nxt[0]); nxt[0] += 1
    if PRIO: e('s_setprio 3')
    def qloads():
        for u in range(2):
            for s in range(4):
                r = vQ + (u * 4 + s) * 4
                g.load('buffer_load_dwordx4 v[%d:%d], v10, s[%d:%d], %s offen offset:%d' %
                       (r, r + 3, sQ, sQ + 3, ('s%d' % s4096) if u else '0', 64 * s), 'q')
    if FAST:
        slT = vS + 6 * 16
        qloads(); fill()
        e('s_mov_b32 s%d, 0xaaaaaaaa' % sODD); e('s_mov_b32 s%d, s%d' % (sODD + 1, sODD))
        def srd2(d, p, off_sgpr, nrec):
            e('s_add_u32 s%d, s%d, s%d' % (d, sPTR + 2 * p, off_sgpr)); e('s_addc_u32 s%d, s%d, 0' % (d + 1, sPTR + 2 * p + 1))
            e(('s_movk_i32 s%d, %d' if nrec < 32768 else 's_mov_b32 s%d, %d') % (d + 2, nrec)); e('s_mov_b32 s%d, s%d' % (d + 3, sQ + 3))
        srd2(sV, 2, sT, 524288 - WMAX)
        srd2(sOUT, 6, sT2, 8192)
        e('s_lshl_b32 s%d, s2, 11' % sT)
        srd2(sKT, 3, sT, 2048)
        srd2(sVT, 4, sT, 2048)
        e('s_lshr_b32 s%d, s2, 3' % sT)
        e('s_lshl_b32 s%d, s%d, 7' % (sT, sT))
        srd2(sMK, 5, sT, 128)
        e('v_and_b32 v12, 7, v0'); e('v_bfe_u32 v13, v0, 4, 2'); e('v_lshlrev_b32 v13, 1, v13'); e('v_lshl_add_u32 v11, v12, 4, v13')
        for s in range(4):
            g.load('buffer_load_dwordx4 v[%d:%d], v%d, s[%d:%d], 0 offen offset:%d' %
                   (slT + 4 * s, slT + 4 * s + 3, kvo(s), sKT, sKT + 3, kio(s)), 'kt')
        g.load('buffer_load_ushort v%d, v11, s[%d:%d], 0 offen' % (vADD0, sMK, sMK + 3), 'mk')
        g.load('buffer_load_ushort v%d, v11, s[%d:%d], 0 offen offset:8' % (vADD1, sMK, sMK + 3), 'mk')
        e('v_and_b32 v%d, 63, v0' % vVOFF); e('v_lshlrev_b32 v%d, 4, v%d' % (vVOFF, vVOFF))
        e('s_lshl_b32 s%d, s%d, 16' % (sOFFV, sWAVE))
        e('s_mov_b32 s%d, 0x%08x' % (sC, f32(CEXP)))
        e('s_mov_b32 s%d, 0x05040100' % sPLO)
        e('s_mov_b32 s%d, 0x07060302' % sPHI)
        e('s_mov_b32 s%d, 0x%08x' % (sBIG, f32(BIG)))
    else:
        slT = free.pop(0)
        if EARLY: fill()
        srd(sV, 2, sT, 524288 if LAT else 524288 - WMAX)
        e('s_lshl_b32 s%d, s2, 13' % sT)
        srd(sQ, 0, sT, 8192)
        srd(sOUT, 6, sT, 8192)
        e('s_lshl_b32 s%d, s2, 11' % sT)
        srd(sKT, 3, sT, 2048)
        srd(sVT, 4, sT, 2048)
        e('s_lshr_b32 s%d, s2, 3' % sT)
        e('s_lshl_b32 s%d, s%d, 7' % (sT, sT))
        srd(sMK, 5, sT, 128)

        c('Q loads')
        for u in range(2):
            for s in range(4):
                r = vQ + (u * 4 + s) * 4
                g.load('buffer_load_dwordx4 v[%d:%d], v10, s[%d:%d], %s offen offset:%d' %
                       (r, r + 3, sQ, sQ + 3, ('s%d' % s4096) if u else '0', 64 * s), 'q')
        c('tree K + mask loads')
        for s in range(4):
            g.load('buffer_load_dwordx4 v[%d:%d], v%d, s[%d:%d], 0 offen offset:%d' %
                   (slT + 4 * s, slT + 4 * s + 3, vKT[s & 1] if WP else kvo(s), sKT, sKT + 3, kio(s)), 'kt')
        g.load('buffer_load_ushort v%d, v11, s[%d:%d], 0 offen' % (vADD0, sMK, sMK + 3), 'mk')
        g.load('buffer_load_ushort v%d, v11, s[%d:%d], 0 offen offset:8' % (vADD1, sMK, sMK + 3), 'mk')
        if int(opts.get('vpre', 0)):
            g.load('buffer_load_dword v%d, off, s[%d:%d], 0' % (vT0, sV, sV + 3), 'mk')
        fill()
    def mf(d, a, b, cc, k16=False):
        if k16: e('v_mfma_f32_16x16x16_bf16 v[%d:%d], v[%d:%d], v[%d:%d], %s' % (d, d + 3, a, a + 1, b, b + 1, cc))
        else: e('v_mfma_f32_16x16x32_bf16 v[%d:%d], v[%d:%d], v[%d:%d], %s' % (d, d + 3, a, a + 3, b, b + 3, cc))
    acc = lambda d: 'v[%d:%d]' % (d, d + 3)
    def qk(sl, dst, tmp):
        e('s_mov_b64 exec, s[%d:%d]' % (sODD, sODD + 1))
        for h in range(2):
            for k in range(4):
                e('v_swap_b32 v%d, v%d' % (sl + 8 * h + k, sl + 8 * h + 4 + k))
        e('s_mov_b64 exec, -1')
        e('s_nop 1')
        for u in range(2):
            for x in range(2):
                d = dst[u] if x == 0 else tmp[u]
                for h in range(2):
                    s = 2 * h + x
                    mf(d, sl + 4 * s, vQ + (u * 4 + s) * 4, '0' if h == 0 else acc(d))
    def qk_fix(dst, tmp, rs=range(4)):
        for u in range(2):
            for r in rs:
                e('v_add_f32 v%d, v%d, v%d' % (dst[u] + r, dst[u] + r, tmp[u] + (r ^ 1)))
    vTT = vS + 7 * 16
    def tree_qk():
        c('tree QK')
        g.wait(['q', 'kt', 'mk'])
        qk(slT, [vTT, vTT + 4], [vTT + 8, vTT + 12])
        if not FAST: free.append(slT); fill()
        c('mask term: add = (1 - mask) * (-1e9/scale) ; waves != 0 -> -inf')
        e('v_lshlrev_b32 v%d, 16, v%d' % (vADD0, vADD0))
        e('v_lshlrev_b32 v%d, 16, v%d' % (vADD1, vADD1))
        e('v_sub_f32 v%d, 1.0, v%d' % (vADD0, vADD0))
        e('v_sub_f32 v%d, 1.0, v%d' % (vADD1, vADD1))
        e('v_mul_f32 v%d, s%d, v%d' % (vADD0, sBIG, vADD0))
        e('v_mul_f32 v%d, s%d, v%d' % (vADD1, sBIG, vADD1))
        e('s_cmp_eq_u32 s%d, 0' % sWAVE)
        e('s_cbranch_scc1 L_w0')
        e('v_mov_b32 v%d, 0xff800000' % vADD0)
        e('v_mov_b32 v%d, 0xff800000' % vADD1)
        g.lab('L_w0')
        e('s_nop 4')
        qk_fix([vTT, vTT + 4], [vTT + 8, vTT + 12], range(2))
        e('v_add_f32 v%d, v%d, v%d' % (vTS + 0, vTT + 0, vADD0))
        e('v_add_f32 v%d, v%d, v%d' % (vTS + 1, vTT + 1, vADD1))
        e('v_add_f32 v%d, v%d, v%d' % (vTS + 2, vTT + 4, vADD0))
        e('v_add_f32 v%d, v%d, v%d' % (vTS + 3, vTT + 5, vADD1))

    stamp()
    g.wait(['q'])
    stamp()
    if not EARLY and not FAST: tree_qk()
    c('K phase')
    for t in range(16):
        b, tau = t // 2, t % 2
        g.wait([('u', t)])
        sl = unit_slot[t]
        dst = [vS + b * 16 + u * 8 + tau * 4 for u in range(2)]
        tmp = [vTMP + (t % 2) * 8 + u * 4 for u in range(2)]
        qk(sl, dst, tmp)
        if t > 0: qk_fix(*prev)
        prev = (dst, tmp)
        free.append(sl); done[0] += 1
        if t == 15: free.append(vQ)
        if PRIO == 1 and t == 7: e('s_setprio 2')
        if PRIO == 1 and t == 15: e('s_setprio 1')
        fill()
        if EARLY and t == 2: tree_qk()
        if FAST and t == 3: tree_qk()
    stamp()
    c('softmax: max')
    e('s_nop 7')
    qk_fix(*prev)
    free.append(vTMP); fill()
    for u in range(2):
        vals = [vS + b * 16 + u * 8 + k for b in range(8) for k in range(8)] + [vTS + 2 * u, vTS + 2 * u + 1]
        e('v_max_f32 v%d, v%d, v%d' % (vM[u], vals[0], vals[1]))
        for k in range(2, len(vals), 2):
            e('v_max3_f32 v%d, v%d, v%d, v%d' % (vM[u], vM[u], vals[k], vals[k + 1]))
    def xreduce(regs, op):
        tmps = [vT0, vT1]
        for sw in ('v_permlane16_swap_b32', 'v_permlane32_swap_b32'):
            for r, t in zip(regs, tmps): e('v_mov_b32 v%d, v%d' % (t, r))
            e('s_nop 1')
            for r, t in zip(regs, tmps): e('%s v%d, v%d' % (sw, r, t))
            e('s_nop 1')
            for r, t in zip(regs, tmps): e('%s v%d, v%d, v%d' % (op, r, r, t))
    xreduce(vM, 'v_max_f32')
    c('softmax: exp / sum / pack')
    vMC = [vVT, vVT + 1]; vL2 = [vVT + 2, vVT + 3]
    for u in range(2):
        e('v_mul_f32 v%d, s%d, v%d' % (vMC[u], sC, vM[u]))
        e('v_mov_b32 v%d, 0' % vL[u])
    for u in range(2):
        for k in range(2):
            r = vTS + 2 * u + k
            e('v_fma_f32 v%d, v%d, s%d, -v%d' % (r, r, sC, vMC[u]))
    for r in range(vTS, vTS + 4): e('v_exp_f32 v%d, v%d' % (r, r))
    e('s_nop 0')
    for u in range(2): e('v_add_f32 v%d, v%d, v%d' % (vL2[u], vTS + 2 * u, vTS + 2 * u + 1))
    e('v_cvt_pk_bf16_f32 v%d, v%d, v%d' % (vTS, vTS, vTS + 1))
    e('v_mov_b32 v%d, 0' % (vTS + 1))
    e('v_cvt_pk_bf16_f32 v%d, v%d, v%d' % (vTS + 2, vTS + 2, vTS + 3))
    e('v_mov_b32 v%d, 0' % (vTS + 3))
    for b in range(8):
        for u in range(2):
            base = vS + b * 16 + u * 8
            for k in range(8): e('v_fma_f32 v%d, v%d, s%d, -v%d' % (base + k, base + k, sC, vMC[u]))
            for k in range(8): e('v_exp_f32 v%d, v%d' % (base + k, base + k))
            for k in range(0, 8, 2):
                e('v_add_f32 v%d, v%d, v%d' % (vL[u], vL[u], base + k))
                e('v_add_f32 v%d, v%d, v%d' % (vL2[u], vL2[u], base + k + 1))
            for k in range(4):
                e('v_cvt_pk_bf16_f32 v%d, v%d, v%d' % (vP + b * 8 + u * 4 + k, base + 2 * k, base + 2 * k + 1))
    for u in range(2): e('v_add_f32 v%d, v%d, v%d' % (vL[u], vL[u], vL2[u]))
    xreduce(vL, 'v_add_f32')
    c('LDS / output addresses; publish (m,l)')
    a0, a1, a2 = vVT, vVT + 1, vVT + 2
    if WP: e('v_and_b32 v%d, 63, v0' % a0)
    else: e('v_lshrrev_b32 v%d, 4, v%d' % (a0, vVOFF))
    e('v_and_b32 v%d, 15, v%d' % (a1, a0))
    e('v_lshrrev_b32 v%d, 4, v%d' % (a2, a0))
    e('v_mul_u32_u24 v%d, %d, v%d' % (vWA, ROW, a1))
    e('v_lshl_add_u32 v%d, v%d, 7, v%d' % (vWA, a2, vWA))
    e('s_mul_i32 s%d, s%d, %d' % (sT, sWAVE, WSZ))
    e('v_add_u32 v%d, s%d, v%d' % (vWA, sT, vWA))
    e('s_lshl_b32 s%d, s%d, 8' % (sT, sWAVE))
    e('s_add_u32 s%d, s%d, %d' % (sT, sT, MLB))
    e('v_lshlrev_b32 v%d, 3, v%d' % (vMLA, a1))
    e('v_add_u32 v%d, s%d, v%d' % (vMLA, sT, vMLA))
    for u in range(2):
        e('ds_write_b64 v%d, v[%d:%d] offset:%d' % (vMLA, vM[u], vL[u], u * 128))
    e('v_lshrrev_b32 v%d, 4, v0' % a0)
    e('v_and_b32 v%d, 15, v0' % a1)
    e('v_mul_u32_u24 v%d, %d, v%d' % (vRA, ROW, a0))
    e('v_lshl_add_u32 v%d, v%d, 5, v%d' % (vRA, a1, vRA))
    e('v_add_u32 v%d, %d, v%d' % (vRB, 4 * WSZ, vRA))
    e('v_lshlrev_b32 v%d, 3, v%d' % (vRM, a0))
    e('v_add_u32 v%d, %d, v%d' % (vRM, MLB, vRM))
    e('v_lshlrev_b32 v%d, 8, v%d' % (vOA, a0))
    e('v_lshrrev_b32 v%d, 2, v%d' % (a2, a1))
    e('v_lshl_add_u32 v%d, v%d, 6, v%d' % (vOA, a2, vOA))
    e('v_and_b32 v%d, 3, v%d' % (a2, a1))
    e('v_lshl_add_u32 v%d, v%d, 2, v%d' % (vOA, a2, vOA))
    stamp()
    c('tree PV (initialises O)')
    g.wait([('u', 16)])
    sa = unit_slot[16]
    for cc in range(4):
        tb = vVT + (cc % 2) * 8
        e('v_perm_b32 v%d, v%d, v%d, s%d' % (tb, sa + 4 + cc, sa + cc, sPLO))
        e('v_mov_b32 v%d, 0' % (tb + 1))
        e('v_perm_b32 v%d, v%d, v%d, s%d' % (tb + 2, sa + 4 + cc, sa + cc, sPHI))
        e('v_mov_b32 v%d, 0' % (tb + 3))
        e('s_nop 1')
        for h in range(2):
            for u in range(2):
                mf(vO + ((2 * cc + h) * 2 + u) * 4, tb + 2 * h, vTS + 2 * u, '0', k16=True)
    free.append(sa); done[0] += 1; fill()
    c('V phase')
    def owrite(cc):
        for h in range(2):
            for u in range(2):
                j = 2 * cc + h; d = vO + (j * 2 + u) * 4
                e('ds_write_b128 v%d, v[%d:%d] offset:%d' % (vWA, d, d + 3, u * 16 * ROW + j * 16))
    for b in range(8):
        g.wait([('u', 17 + 2 * b), ('u', 18 + 2 * b)])
        sa, sb = unit_slot[17 + 2 * b], unit_slot[18 + 2 * b]
        rows = [sa + 4 * i for i in range(4)] + [sb + 4 * i for i in range(4)]
        for cc in range(4):
            tb = vVT + (cc % 2) * 8
            for p in range(4):
                e('v_perm_b32 v%d, v%d, v%d, s%d' % (tb + p, rows[2 * p + 1] + cc, rows[2 * p] + cc, sPLO))
            for p in range(4):
                e('v_perm_b32 v%d, v%d, v%d, s%d' % (tb + 4 + p, rows[2 * p + 1] + cc, rows[2 * p] + cc, sPHI))
            if b == 7 and cc > 0: owrite(cc - 1)
            for h in range(2):
                for u in range(2):
                    d = vO + ((2 * cc + h) * 2 + u) * 4
                    mf(d, tb + 4 * h, vP + b * 8 + u * 4, acc(d))
        free.append(sa); free.append(sb); done[0] += 2
        if PRIO == 1 and b == 3: e('s_setprio 0')
        if GROW and b % 2 == 1: free.append(vP + (b - 1) * 8)
        fill()
    stamp()
    c('combine through LDS')
    e('s_nop 7')
    owrite(3)
    e('s_waitcnt lgkmcnt(0)')
    stamp()
    if DRY:
        e('s_mov_b32 s4, 0')
        e('s_cmp_lt_u32 s%d, %d' % (sWAVE, DRY))
        e('s_cbranch_scc1 L_comb')
        g.lab('L_bar')
        e('s_mov_b32 s4, 1')
    e('s_barrier')
    if DRY: g.lab('L_comb')
    stamp()
    vR = 16; vX = 32; vF = vRING; vMM = vRING + 8; vLL = vRING + 9; vY = vRING + 16
    def rdp(w):
        base = vRA if w < 4 else vRB; off = (w % 4) * WSZ
        e('ds_read_b128 v[%d:%d], v%d offset:%d' % (vX + 8 * w, vX + 8 * w + 3, base, off))
        e('ds_read_b128 v[%d:%d], v%d offset:%d' % (vX + 8 * w + 4, vX + 8 * w + 7, base, off + 16))
    for w in range(NW): e('ds_read_b64 v[%d:%d], v%d offset:%d' % (vR + 2 * w, vR + 2 * w + 1, vRM, w * 256))
    for w in range(3): rdp(w)
    e('s_waitcnt lgkmcnt(6)')
    for w in range(3, 7): rdp(w)
    e('v_max_f32 v%d, v%d, v%d' % (vMM, vR, vR + 2))
    for w in range(2, NW, 2): e('v_max3_f32 v%d, v%d, v%d, v%d' % (vMM, vMM, vR + 2 * w, vR + 2 * w + 2))
    e('v_mul_f32 v%d, s%d, v%d' % (vMM, sC, vMM))
    for w in range(NW): e('v_fma_f32 v%d, v%d, s%d, -v%d' % (vF + w, vR + 2 * w, sC, vMM))
    for w in range(NW): e('v_exp_f32 v%d, v%d' % (vF + w, vF + w))
    e('s_nop 0')
    e('v_mul_f32 v%d, v%d, v%d' % (vLL, vF, vR + 1))
    for w in range(1, NW): e('v_fma_f32 v%d, v%d, v%d, v%d' % (vLL, vF + w, vR + 2 * w + 1, vLL))
    e('v_rcp_f32 v%d, v%d' % (vLL, vLL))
    e('s_waitcnt lgkmcnt(8)')
    rdp(7)
    def pk(w, k):
        f = vF + (w & ~1)
        sel = 'op_sel:[0,1,0] op_sel_hi:[1,1,1]' if (w & 1) else 'op_sel_hi:[1,0,1]'
        if w == 0:
            e('v_pk_mul_f32 v[%d:%d], v[%d:%d], v[%d:%d] op_sel_hi:[1,0]' % (vY + k, vY + k + 1, vX + k, vX + k + 1, f, f + 1))
        else:
            e('v_pk_fma_f32 v[%d:%d], v[%d:%d], v[%d:%d], v[%d:%d] %s' % (vY + k, vY + k + 1, vX + 8 * w + k, vX + 8 * w + k + 1, f, f + 1, vY + k, vY + k + 1, sel))
    for w in range(NW):
        if w >= 3: e('s_waitcnt lgkmcnt(%d)' % (2 * (7 - w)))
        for k in range(0, 8, 2): pk(w, k)
    for k in range(8): e('v_mul_f32 v%d, v%d, v%d' % (vY + k, vY + k, vLL))
    for r in range(4): e('v_cvt_pk_bf16_f32 v%d, v%d, v%d' % (vY + 8 + r, vY + r, vY + 4 + r))
    if int(opts.get('x4', 1)):
        D = vY + 8
        e('s_mov_b32 s%d, 0xcccccccc' % sT); e('s_mov_b32 s%d, 0xcccccccc' % sT2)
        for (msk, qp, prs) in (('s[%d:%d]' % (sODD, sODD + 1), '[1,0,3,2]', ((0, 1), (2, 3))), ('s[%d:%d]' % (sT, sT2), '[2,3,0,1]', ((0, 2), (1, 3)))):
            e('s_mov_b64 exec, %s' % msk)
            for x, y in prs: e('v_swap_b32 v%d, v%d' % (D + x, D + y))
            e('s_mov_b64 exec, -1')
            e('s_nop 1')
            for x, y in prs: e('v_mov_b32_dpp v%d, v%d quad_perm:%s row_mask:0xf bank_mask:0xf' % (D + y, D + y, qp))
            e('s_mov_b64 exec, %s' % msk)
            for x, y in prs: e('v_swap_b32 v%d, v%d' % (D + x, D + y))
        e('s_mov_b64 exec, -1')
        e('v_lshlrev_b32 v%d, 4, v0' % vOA)
        if DRY:
            e('s_cmp_eq_u32 s4, 0')
            e('s_cbranch_scc1 L_bar')
        e('buffer_store_dwordx4 v[%d:%d], v%d, s[%d:%d], 0 offen%s' % (D, D + 3, vOA, sOUT, sOUT + 3, (' ' + opts.get('fs', '')).rstrip()))
    else:
        for r in range(4):
            e('buffer_store_dword v%d, v%d, s[%d:%d], 0 offen offset:%d' % (vY + 8 + r, vOA, sOUT, sOUT + 3, 16 * r))
    if STAMP:
        e('s_waitcnt vmcnt(0)')
        stamp()
        e('s_load_dwordx2 s[36:37], s[0:1], 64')
        e('s_lshl_b32 s%d, s2, 3' % sT); e('s_add_u32 s%d, s%d, s%d' % (sT, sT, sWAVE)); e('s_lshl_b32 s%d, s%d, 6' % (sT, sT))
        e('s_waitcnt lgkmcnt(0)')
        e('s_add_u32 s36, s36, s%d' % sT); e('s_addc_u32 s37, s37, 0'); e('s_mov_b32 s38, 64'); e('s_mov_b32 s39, 0x00020000')
        e('v_mov_b32 v1, 0')
        for k in range(nst[0]):
            e('v_mov_b32 v2, s%d' % (64 + 2 * k))
            e('buffer_store_dword v2, v1, s[36:39], 0 offen offset:%d' % (4 * k)); e('s_nop 1')
    g.lab('L_end')
    e('s_endpgm')
    lds = MLB + NW * 256
    out = HDR + '; @launch grid=(256,1,1) block=(512,1,1) lds=%d\n' % lds
    out += '.amdgcn_target "amdgcn-amd-amdhsa--gfx950"\n.text\n.globl %s_kernel\n.p2align 8\n.type %s_kernel,@function\n%s_kernel:\n' % (NAME, NAME, NAME)
    out += '\n'.join(g.l) + '\n'
    out += '''.section .rodata,"a"
.p2align 6
.amdhsa_kernel %s_kernel
  .amdhsa_next_free_vgpr 256
  .amdhsa_next_free_sgpr %d
  .amdhsa_accum_offset 256
  .amdhsa_group_segment_fixed_size 0
  .amdhsa_kernarg_size 72
  .amdhsa_user_sgpr_count 2
  .amdhsa_user_sgpr_kernarg_segment_ptr 1
  .amdhsa_system_sgpr_workgroup_id_x 1
.end_amdhsa_kernel
''' % (NAME, 96 if STAMP else 64)
    return out

if __name__ == '__main__':
    path = sys.argv[1]
    opts = dict(a.split('=') for a in sys.argv[2:])
    opts = {k: v.replace('+', ' ') for k, v in opts.items()}
    open(path, 'w').write(gen(opts))
```

```python
import sys, struct, math
NAME = "standalone__tree_speculative_verify_tree_attention_over_candidate_token_tree__sampling"
HDR = open('cdna_kernels/%s.s.ref' % NAME).read().split('; @launch')[0]
def f32(x): return struct.unpack('<I', struct.pack('<f', x))[0]

class G:
    def __init__(s): s.l = []; s.vm = []
    def e(s, t): s.l.append('    ' + t)
    def c(s, t): s.l.append('    ; ' + t)
    def lab(s, t): s.l.append(t + ':')
    def load(s, t, tag): s.e(t); s.vm.append(tag)
    def wait(s, tags):
        idx = [i for i, t in enumerate(s.vm) if t in tags]
        if not idx: return
        last = max(idx)
        s.e('s_waitcnt vmcnt(%d)' % (len(s.vm) - 1 - last))
        s.vm = s.vm[last + 1:]

def gen(opts):
    NW = 8
    FLK = (' ' + opts.get('fk', '')).rstrip(); FLV = (' ' + opts.get('fv', 'nt')).rstrip()
    PRIO = int(opts.get('prio', 0)); STAMP = int(opts.get('stamp', 0)); GROW = int(opts.get('grow', 1))
    g = G(); e, c = g.e, g.c
    vKOFF = 1; vVOFF = 2; vADD0 = 3; vADD1 = 4; vKOFF1 = 5
    vTS = 6
    vM = [10, 12]; vL = [11, 13]
    vT0 = 14; vT1 = 15
    vQ = 16; vVT = 32; vS = 48; vRING = 176
    slots = [vRING + 16 * i for i in range(4)]
    vTMP = vRING + 64
    vP = vS; vO = vS + 64
    vWA = 1; vMLA = 5; vRA = 3; vRB = 4; vRM = 14; vOA = 15
    sWAVE = 3
    sQ, sK, sV, sKT, sVT, sMK, sOUT = 8, 12, 16, 20, 24, 28, 32
    sPTR = 36
    sC = 52; sPLO = 53; sPHI = 54; s4096 = 55; sOFFK = 56; sOFFV = 57; sT = 58; sT2 = 59; sBIG = 60; sODD = 62
    SCALE = 128 ** -0.5; CEXP = SCALE * math.log2(math.e); BIG = -1e9 / SCALE
    ROW = 528; WSZ = 32 * ROW; MLB = NW * WSZ
    nst = [0]
    def stamp():
        if not STAMP: return
        e('s_memrealtime s[%d:%d]' % (64 + 2 * nst[0], 65 + 2 * nst[0])); e('s_waitcnt lgkmcnt(0)'); nst[0] += 1

    FAST = int(opts.get('fast', 0)); DRY = int(opts.get('dry', 0))
    if FAST:
        PACE = 0; LAT = 0; ROT = '0,0'; WP = None; RP = [8, 9, 10, 11]; WB = 12; WMAX = 7 << 12; cnt = {}
        e('s_cmpk_ge_u32 s2, 0x100')
        e('s_cbranch_scc1 L_end')
        stamp()
        e('s_load_dwordx16 s[%d:%d], s[0:1], 0' % (sPTR, sPTR + 15))
        e('v_lshrrev_b32 v%d, 6, v0' % vT0)
        e('v_bfe_u32 v22, v0, 4, 2')
        e('v_readfirstlane_b32 s%d, v%d' % (sWAVE, vT0))
        e('v_lshlrev_b32 v23, 4, v22')
        e('v_and_b32 v20, 15, v0')
        e('v_lshl_add_u32 v10, v20, 8, v23')
        e('v_and_b32 v20, 13, v0')
        e('v_lshl_add_u32 v%d, v20, 6, v23' % vKOFF)
        e('v_and_b32 v20, 2, v0')
        e('v_lshl_add_u32 v%d, v20, 10, v%d' % (vKOFF, vKOFF))
        e('v_xor_b32 v%d, 0x440, v%d' % (vKOFF1, vKOFF))
        e('s_lshl_b32 s%d, s2, 19' % sT)
        e('s_lshl_b32 s4, s%d, 12' % sWAVE)
        e('s_add_u32 s%d, s%d, s4' % (sT, sT))
        e('s_lshl_b32 s%d, s%d, 16' % (sOFFK, sWAVE))
        e('s_lshl_b32 s%d, s2, 13' % sT2)
        e('s_movk_i32 s%d, 0x1000' % s4096)
        e('s_movk_i32 s%d, 0x2000' % (sQ + 2))
        e('s_mov_b32 s%d, 0x00020000' % (sQ + 3))
        e('s_mov_b32 s%d, %d' % (sK + 2, 524288 - WMAX))
        e('s_mov_b32 s%d, s%d' % (sK + 3, sQ + 3))
        e('s_waitcnt lgkmcnt(0)')
        e('s_add_u32 s%d, s%d, s%d' % (sQ, sPTR, sT2)); e('s_addc_u32 s%d, s%d, 0' % (sQ + 1, sPTR + 1))
        e('s_add_u32 s%d, s%d, s%d' % (sK, sPTR + 2, sT)); e('s_addc_u32 s%d, s%d, 0' % (sK + 1, sPTR + 3))
    else:
        e('s_cmp_ge_u32 s2, 256')
        e('s_cbranch_scc1 L_end')
        stamp()
        e('s_load_dwordx16 s[%d:%d], s[0:1], 0' % (sPTR, sPTR + 15))
        PACE = int(opts.get('pace', 0)); LEAD = int(opts.get('lead', 4 * PACE)); SLP = int(opts.get('slp', 1))
        if PACE: e('s_memrealtime s[4:5]')
        RM = int(opts.get('remap', 0))
        if 'rmask' in opts:
            for i, (bit, mk) in enumerate(zip([0,1,2,3,4,5,0,1,2,3,4,5,6,7], opts['rmask'].split(','))):
                e('s_bitcmp1_b32 s2, %d' % bit); e('s_cbranch_scc0 L_rm%d' % i); e('s_xor_b32 s2, s2, %s' % mk); g.lab('L_rm%d' % i)
        if 'mix' in opts:
            ma, sa_, mb, sb_ = (int(x) for x in opts['mix'].split(','))
            gm = lambda x: (lambda y: y ^ (y >> sb_))((((x * ma) & 255) ^ (((x * ma) & 255) >> sa_)) * mb & 255)
            assert sorted(gm(x) for x in range(256)) == list(range(256))
            for m_, s_ in ((ma, sa_), (mb, sb_)):
                e('s_mul_i32 s2, s2, %d' % m_); e('s_and_b32 s2, s2, 0xff'); e('s_lshr_b32 s4, s2, %d' % s_); e('s_xor_b32 s2, s2, s4')
        if RM == 1:
            e('s_and_b32 s4, s2, 7'); e('s_lshl_b32 s4, s4, 5'); e('s_lshr_b32 s2, s2, 3'); e('s_or_b32 s2, s2, s4')
        if RM == 2:
            e('s_and_b32 s4, s2, 7'); e('s_lshl_b32 s4, s4, 2'); e('s_bfe_u32 s5, s2, 0x20003'); e('s_or_b32 s4, s4, s5')
            e('s_andn2_b32 s2, s2, 31'); e('s_or_b32 s2, s2, s4')
        e('v_lshrrev_b32 v%d, 6, v0' % vT0)
        e('v_and_b32 v%d, 63, v0' % vT1)
        e('v_readfirstlane_b32 s%d, v%d' % (sWAVE, vT0))
        WP = [int(x) for x in opts['wp'].split(',')] if 'wp' in opts else None
        RP = [b for b in range(8, 15) if b not in WP] if WP else [8, 9, 10, 11]
        vKT = [48, 49]
        e('v_lshlrev_b32 v%d, 4, v%d' % (vVOFF, vT1))
        e('v_lshrrev_b32 v22, 4, v%d' % vT1)
        if WP:
            e('v_and_b32 v%d, 0xff, v%d' % (vVOFF, vVOFF))
            for j in range(2):
                e('v_bfe_u32 v20, v22, %d, 1' % j); e('v_lshl_add_u32 v%d, v20, %d, v%d' % (vVOFF, RP[j], vVOFF))
        e('v_lshlrev_b32 v23, 4, v22')
        c('K voffsets: slot = 2a+l ; key row = 4*(slot&3) + (slot>>2) ; + ((mu^l)*64) + g*16')
        for ll, dst in ((0, vKOFF), (1, vKOFF1)):
            e('v_and_b32 v20, 14, v%d' % vT1); e('v_or_b32 v20, %d, v20' % ll)
            e('v_and_b32 v21, 3, v20'); e('v_lshlrev_b32 v21, 10, v21'); e('v_bfe_u32 v20, v20, 2, 2'); e('v_lshl_add_u32 v21, v20, 8, v21')
            e('v_and_b32 v20, 1, v%d' % vT1); e('v_xor_b32 v20, %d, v20' % ll); e('v_lshl_add_u32 v21, v20, 6, v21')
            e('v_add_u32 v%d, v21, v23' % dst)
            if WP:
                e('v_mov_b32 v%d, v%d' % (vKT[ll], dst))
                e('v_and_b32 v%d, 0xff, v%d' % (dst, dst))
                for j in range(4):
                    e('v_bfe_u32 v20, v%d, %d, 1' % (vKT[ll], 8 + j)); e('v_lshl_add_u32 v%d, v20, %d, v%d' % (dst, RP[j], dst))
        c('Q voffset (v10) = n*256 + g*16 ; mask voffset (v11) = (n&7)*16 + g*2')
        e('v_and_b32 v20, 15, v%d' % vT1)
        e('v_lshl_add_u32 v10, v20, 8, v23')
        e('v_and_b32 v20, 7, v%d' % vT1)
        e('v_lshlrev_b32 v21, 1, v22')
        e('v_lshl_add_u32 v11, v20, 4, v21')
        e('s_mov_b32 s%d, 0x%08x' % (sC, f32(CEXP)))
        e('s_mov_b32 s%d, 0x05040100' % sPLO)
        e('s_mov_b32 s%d, 0x07060302' % sPHI)
        e('s_mov_b32 s%d, 4096' % s4096)
        e('s_mov_b32 s%d, 0x%08x' % (sBIG, f32(BIG)))
        e('s_mov_b32 s%d, 0xaaaaaaaa' % sODD); e('s_mov_b32 s%d, 0xaaaaaaaa' % (sODD + 1))
        e('s_lshl_b32 s%d, s2, 19' % sT)
        WB = int(opts.get('wb', 12))
        if WP:
            e('s_mov_b32 s%d, 0' % sT2)
            for j in range(3):
                e('s_bfe_u32 s4, s%d, 0x%x' % (sWAVE, 0x10000 | j)); e('s_lshl_b32 s4, s4, %d' % WP[j]); e('s_or_b32 s%d, s%d, s4' % (sT2, sT2))
        else:
            e('s_lshl_b32 s%d, s%d, %d' % (sT2, sWAVE, WB))
        if 'wx' in opts:
            e('s_bfe_u32 s4, s2, 0x%x' % (0x10000 | int(opts['wx']))); e('s_lshl_b32 s4, s4, %d' % (WP[2] if WP else 14)); e('s_xor_b32 s%d, s%d, s4' % (sT2, sT2))
        WMAX = sum(1 << x for x in WP) if WP else 7 << WB
        tbits = [b for b in range(12, 19) if not WB <= b < WB + 3]
        if opts.get('tord'): tbits = [tbits[int(ch)] for ch in opts['tord']]
        dep = lambda t: sum(((t >> i) & 1) << b for i, b in enumerate(tbits))
        cnt = {}
        LAT = int(opts.get('lat', 0))
        if not LAT: e('s_add_u32 s%d, s%d, s%d' % (sT, sT, sT2))
        ROT = opts.get('rot', '')
        if ROT:
            sh, mul = (int(x) for x in ROT.split(','))
            e('s_lshr_b32 s%d, s2, %d' % (sOFFK, sh))
            e('s_mul_i32 s%d, s%d, %d' % (sOFFK, sOFFK, mul))
            HROT = int(opts.get('hrot', 0))
            if HROT == 1:
                e('s_mul_i32 s%d, s2, 0x9e3779b1' % sOFFK); e('s_lshr_b32 s%d, s%d, 28' % (sOFFK, sOFFK))
            if HROT == 2:
                e('s_lshl_b32 s%d, s2, 3' % sOFFK); e('s_add_u32 s%d, s%d, s%d' % (sOFFK, sOFFK, sWAVE))
                e('s_mul_i32 s%d, s%d, 0x9e3779b1' % (sOFFK, sOFFK)); e('s_lshr_b32 s%d, s%d, 28' % (sOFFK, sOFFK))
            if HROT == 3:
                e('s_mul_i32 s%d, s2, 0x9e3779b1' % sOFFK); e('s_lshr_b32 s%d, s%d, 16' % (sOFFV, sOFFK)); e('s_xor_b32 s%d, s%d, s%d' % (sOFFK, sOFFK, sOFFV))
                e('s_mul_i32 s%d, s%d, 0x85ebca6b' % (sOFFK, sOFFK)); e('s_lshr_b32 s%d, s%d, 28' % (sOFFK, sOFFK))
            if int(opts.get('wrot', 0)):
                e('s_mul_i32 s%d, s%d, %d' % (sOFFV, sWAVE, int(opts['wrot'])))
                e('s_add_u32 s%d, s%d, s%d' % (sOFFK, sOFFK, sOFFV))
            e('s_and_b32 s%d, s%d, 15' % (sOFFK, sOFFK))
            if LAT:
                e('s_mul_i32 s5, s%d, %d' % (sOFFK, LAT)); e('s_add_u32 s5, s5, s%d' % sWAVE); e('s_and_b32 s5, s5, 7'); e('s_lshl_b32 s5, s5, 12')
                e('s_lshl_b32 s4, s%d, 15' % sOFFK); e('s_mov_b32 s6, s4'); e('s_mov_b32 s7, s5')
                e('s_or_b32 s%d, s4, s5' % sOFFK)
            else:
                e('s_lshl_b32 s%d, s%d, 15' % (sOFFK, sOFFK))
            e('s_mov_b32 s%d, s%d' % (sOFFV, sOFFK))
        else:
            e('s_mov_b32 s%d, 0' % sOFFK)
            e('s_mov_b32 s%d, 0' % sOFFV)
        e('s_waitcnt lgkmcnt(0)')
    def srd(d, p, off_sgpr, nrec):
        e('s_add_u32 s%d, s%d, s%d' % (d, sPTR + 2 * p, off_sgpr))
        e('s_addc_u32 s%d, s%d, 0' % (d + 1, sPTR + 2 * p + 1))
        e('s_mov_b32 s%d, %d' % (d + 2, nrec))
        e('s_mov_b32 s%d, 0x00020000' % (d + 3))
    STEP = 32768 * int(opts.get('step', 1))
    if not FAST: srd(sK, 1, sT, 524288 if LAT else 524288 - WMAX)
    EARLY = int(opts.get('early', 0))
    free = list(slots); unit_slot = {}
    kvo = lambda s: vKOFF1 if (s & 1) else vKOFF
    kio = lambda s: 128 * (s >> 1)
    NU = 33
    def adv(so, a):
        if WB != 12 or opts.get('tord'):
            cnt[so] = cnt.get(so, 0) + 1
            e('s_mov_b32 s%d, %d' % (so, dep(cnt[so] & 15)))
        elif LAT:
            e('s_add_u32 s%d, s%d, 32768' % (a, a)); e('s_and_b32 s%d, s%d, 0x7ffff' % (a, a))
            e('s_add_u32 s%d, s%d, %d' % (a + 1, a + 1, 4096 * LAT)); e('s_and_b32 s%d, s%d, 0x7fff' % (a + 1, a + 1))
            e('s_or_b32 s%d, s%d, s%d' % (so, a, a + 1))
        else:
            e('s_add_u32 s%d, s%d, %d' % (so, so, STEP))
            if ROT: e('s_and_b32 s%d, s%d, 0x7ffff' % (so, so))
    def issue_unit(j):
        sl = free.pop(0); unit_slot[j] = sl
        if PRIO == 10: e('s_setprio %d' % (3 - (j % 4)))
        if PRIO == 11 and j % 2 == 0: e('s_setprio %d' % (3 - ((j >> 1) % 4)))
        if PRIO == 9:
            pm = dict((int(x.split(':')[0]), int(x.split(':')[1])) for x in opts['pm'].split(','))
            if j in pm: e('s_setprio %d' % pm[j])
        if PRIO in (2, 4) and j == 16: e('s_setprio 0')
        if PRIO == 3 and j == 16: e('s_setprio 1')
        if PRIO == 3 and j == 25: e('s_setprio 0')
        if PRIO == 4 and j == 8: e('s_setprio 2')
        if PRIO == 5 and j in (8, 16, 25): e('s_setprio %d' % {8: 2, 16: 1, 25: 0}[j])
        if PACE and j != 16:
            due = (j if j < 16 else j - 1) * PACE - LEAD
            if due > 0:
                g.lab('L_p%d' % j)
                e('s_memrealtime s[6:7]')
                e('s_waitcnt lgkmcnt(0)')
                e('s_sub_u32 s6, s6, s4')
                e('s_cmp_ge_u32 s6, %d' % due)
                e('s_cbranch_scc1 L_g%d' % j)
                e('s_sleep %d' % SLP)
                e('s_branch L_p%d' % j)
                g.lab('L_g%d' % j)
        if j < 16:
            for s in range(4):
                g.load('buffer_load_dwordx4 v[%d:%d], v%d, s[%d:%d], s%d offen offset:%d%s' %
                       (sl + 4 * s, sl + 4 * s + 3, kvo(s), sK, sK + 3, sOFFK, kio(s), FLK), ('u', j))
            adv(sOFFK, 4)
        elif j == 16:
            va = vVOFF
            if WP:
                va = sl + 15
                e('v_and_b32 v%d, 63, v0' % va); e('v_lshlrev_b32 v%d, 4, v%d' % (va, va))
            for i in range(2):
                g.load('buffer_load_dwordx4 v[%d:%d], v%d, s[%d:%d], 0 offen offset:%d' %
                       (sl + 4 * i, sl + 4 * i + 3, va, sVT, sVT + 3, 1024 * i), ('u', j))
        else:
            if RP[3] > 11: e('s_add_u32 s5, s%d, %d' % (sOFFV, 1 << RP[3]))
            for i in range(4):
                so, io = sOFFV, ((i & 1) << RP[2]) + ((i >> 1) << RP[3])
                if RP[3] > 11 and i >> 1: so, io = 5, (i & 1) << RP[2]
                assert io < 4096
                g.load('buffer_load_dwordx4 v[%d:%d], v%d, s[%d:%d], s%d offen offset:%d%s' %
                       (sl + 4 * i, sl + 4 * i + 3, vVOFF, sV, sV + 3, so, io, FLV), ('u', j))
            adv(sOFFV, 6)
    nxt = [0]; done = [0]; DK = int(opts.get('dk', 99)); DV = int(opts.get('dv', 99))
    def fill():
        while free and nxt[0] < NU and nxt[0] - done[0] < (DK if nxt[0] < 16 else DV):
            issue_unit(nxt[0]); nxt[0] += 1
    if PRIO: e('s_setprio 3')
    def qloads():
        for u in range(2):
            for s in range(4):
                r = vQ + (u * 4 + s) * 4
                g.load('buffer_load_dwordx4 v[%d:%d], v10, s[%d:%d], %s offen offset:%d' %
                       (r, r + 3, sQ, sQ + 3, ('s%d' % s4096) if u else '0', 64 * s), 'q')
    if FAST:
        slT = vS + 6 * 16
        qloads(); fill()
        e('s_mov_b32 s%d, 0xaaaaaaaa' % sODD); e('s_mov_b32 s%d, s%d' % (sODD + 1, sODD))
        def srd2(d, p, off_sgpr, nrec):
            e('s_add_u32 s%d, s%d, s%d' % (d, sPTR + 2 * p, off_sgpr)); e('s_addc_u32 s%d, s%d, 0' % (d + 1, sPTR + 2 * p + 1))
            e(('s_movk_i32 s%d, %d' if nrec < 32768 else 's_mov_b32 s%d, %d') % (d + 2, nrec)); e('s_mov_b32 s%d, s%d' % (d + 3, sQ + 3))
        srd2(sV, 2, sT, 524288 - WMAX)
        srd2(sOUT, 6, sT2, 8192)
        e('s_lshl_b32 s%d, s2, 11' % sT)
        srd2(sKT, 3, sT, 2048)
        srd2(sVT, 4, sT, 2048)
        e('s_lshr_b32 s%d, s2, 3' % sT)
        e('s_lshl_b32 s%d, s%d, 7' % (sT, sT))
        srd2(sMK, 5, sT, 128)
        e('v_and_b32 v12, 7, v0'); e('v_bfe_u32 v13, v0, 4, 2'); e('v_lshlrev_b32 v13, 1, v13'); e('v_lshl_add_u32 v11, v12, 4, v13')
        for s in range(4):
            g.load('buffer_load_dwordx4 v[%d:%d], v%d, s[%d:%d], 0 offen offset:%d' %
                   (slT + 4 * s, slT + 4 * s + 3, kvo(s), sKT, sKT + 3, kio(s)), 'kt')
        g.load('buffer_load_ushort v%d, v11, s[%d:%d], 0 offen' % (vADD0, sMK, sMK + 3), 'mk')
        g.load('buffer_load_ushort v%d, v11, s[%d:%d], 0 offen offset:8' % (vADD1, sMK, sMK + 3), 'mk')
        e('v_and_b32 v%d, 63, v0' % vVOFF); e('v_lshlrev_b32 v%d, 4, v%d' % (vVOFF, vVOFF))
        e('s_lshl_b32 s%d, s%d, 16' % (sOFFV, sWAVE))
        e('s_mov_b32 s%d, 0x%08x' % (sC, f32(CEXP)))
        e('s_mov_b32 s%d, 0x05040100' % sPLO)
        e('s_mov_b32 s%d, 0x07060302' % sPHI)
        e('s_mov_b32 s%d, 0x%08x' % (sBIG, f32(BIG)))
    else:
        slT = free.pop(0)
        if EARLY: fill()
        srd(sV, 2, sT, 524288 if LAT else 524288 - WMAX)
        e('s_lshl_b32 s%d, s2, 13' % sT)
        srd(sQ, 0, sT, 8192)
        srd(sOUT, 6, sT, 8192)
        e('s_lshl_b32 s%d, s2, 11' % sT)
        srd(sKT, 3, sT, 2048)
        srd(sVT, 4, sT, 2048)
        e('s_lshr_b32 s%d, s2, 3' % sT)
        e('s_lshl_b32 s%d, s%d, 7' % (sT, sT))
        srd(sMK, 5, sT, 128)

        c('Q loads')
        for u in range(2):
            for s in range(4):
                r = vQ + (u * 4 + s) * 4
                g.load('buffer_load_dwordx4 v[%d:%d], v10, s[%d:%d], %s offen offset:%d' %
                       (r, r + 3, sQ, sQ + 3, ('s%d' % s4096) if u else '0', 64 * s), 'q')
        c('tree K + mask loads')
        for s in range(4):
            g.load('buffer_load_dwordx4 v[%d:%d], v%d, s[%d:%d], 0 offen offset:%d' %
                   (slT + 4 * s, slT + 4 * s + 3, vKT[s & 1] if WP else kvo(s), sKT, sKT + 3, kio(s)), 'kt')
        g.load('buffer_load_ushort v%d, v11, s[%d:%d], 0 offen' % (vADD0, sMK, sMK + 3), 'mk')
        g.load('buffer_load_ushort v%d, v11, s[%d:%d], 0 offen offset:8' % (vADD1, sMK, sMK + 3), 'mk')
        if int(opts.get('vpre', 0)):
            g.load('buffer_load_dword v%d, off, s[%d:%d], 0' % (vT0, sV, sV + 3), 'mk')
        for ch in opts.get('pre', ''):
            sr = {'v': sV, 't': sVT, 'o': sOUT}[ch]
            g.load('buffer_load_dword v%d, off, s[%d:%d], 0' % (vT0, sr, sr + 3), 'pre')
        fill()
    def mf(d, a, b, cc, k16=False):
        if k16: e('v_mfma_f32_16x16x16_bf16 v[%d:%d], v[%d:%d], v[%d:%d], %s' % (d, d + 3, a, a + 1, b, b + 1, cc))
        else: e('v_mfma_f32_16x16x32_bf16 v[%d:%d], v[%d:%d], v[%d:%d], %s' % (d, d + 3, a, a + 3, b, b + 3, cc))
    acc = lambda d: 'v[%d:%d]' % (d, d + 3)
    def qk(sl, dst, tmp):
        e('s_mov_b64 exec, s[%d:%d]' % (sODD, sODD + 1))
        for h in range(2):
            for k in range(4):
                e('v_swap_b32 v%d, v%d' % (sl + 8 * h + k, sl + 8 * h + 4 + k))
        e('s_mov_b64 exec, -1')
        e('s_nop 1')
        for u in range(2):
            for x in range(2):
                d = dst[u] if x == 0 else tmp[u]
                for h in range(2):
                    s = 2 * h + x
                    mf(d, sl + 4 * s, vQ + (u * 4 + s) * 4, '0' if h == 0 else acc(d))
    def qk_fix(dst, tmp, rs=range(4)):
        for u in range(2):
            for r in rs:
                e('v_add_f32 v%d, v%d, v%d' % (dst[u] + r, dst[u] + r, tmp[u] + (r ^ 1)))
    vTT = vS + 7 * 16
    def tree_qk():
        c('tree QK')
        g.wait(['q', 'kt', 'mk'])
        qk(slT, [vTT, vTT + 4], [vTT + 8, vTT + 12])
        if not FAST: free.append(slT); fill()
        c('mask term: add = (1 - mask) * (-1e9/scale) ; waves != 0 -> -inf')
        e('v_lshlrev_b32 v%d, 16, v%d' % (vADD0, vADD0))
        e('v_lshlrev_b32 v%d, 16, v%d' % (vADD1, vADD1))
        e('v_sub_f32 v%d, 1.0, v%d' % (vADD0, vADD0))
        e('v_sub_f32 v%d, 1.0, v%d' % (vADD1, vADD1))
        e('v_mul_f32 v%d, s%d, v%d' % (vADD0, sBIG, vADD0))
        e('v_mul_f32 v%d, s%d, v%d' % (vADD1, sBIG, vADD1))
        e('s_cmp_eq_u32 s%d, 0' % sWAVE)
        e('s_cbranch_scc1 L_w0')
        e('v_mov_b32 v%d, 0xff800000' % vADD0)
        e('v_mov_b32 v%d, 0xff800000' % vADD1)
        g.lab('L_w0')
        e('s_nop 4')
        qk_fix([vTT, vTT + 4], [vTT + 8, vTT + 12], range(2))
        e('v_add_f32 v%d, v%d, v%d' % (vTS + 0, vTT + 0, vADD0))
        e('v_add_f32 v%d, v%d, v%d' % (vTS + 1, vTT + 1, vADD1))
        e('v_add_f32 v%d, v%d, v%d' % (vTS + 2, vTT + 4, vADD0))
        e('v_add_f32 v%d, v%d, v%d' % (vTS + 3, vTT + 5, vADD1))

    stamp()
    g.wait(['q'])
    stamp()
    if not EARLY and not FAST: tree_qk()
    c('K phase')
    for t in range(16):
        b, tau = t // 2, t % 2
        g.wait([('u', t)])
        sl = unit_slot[t]
        dst = [vS + b * 16 + u * 8 + tau * 4 for u in range(2)]
        tmp = [vTMP + (t % 2) * 8 + u * 4 for u in range(2)]
        qk(sl, dst, tmp)
        if t > 0: qk_fix(*prev)
        prev = (dst, tmp)
        free.append(sl); done[0] += 1
        if t == 15: free.append(vQ)
        if PRIO == 1 and t == 7: e('s_setprio 2')
        if PRIO == 1 and t == 15: e('s_setprio 1')
        fill()
        if EARLY and t == 2: tree_qk()
        if FAST and t == 3: tree_qk()
    stamp()
    c('softmax: max')
    e('s_nop 7')
    qk_fix(*prev)
    free.append(vTMP); fill()
    for u in range(2):
        vals = [vS + b * 16 + u * 8 + k for b in range(8) for k in range(8)] + [vTS + 2 * u, vTS + 2 * u + 1]
        e('v_max_f32 v%d, v%d, v%d' % (vM[u], vals[0], vals[1]))
        for k in range(2, len(vals), 2):
            e('v_max3_f32 v%d, v%d, v%d, v%d' % (vM[u], vM[u], vals[k], vals[k + 1]))
    def xreduce(regs, op):
        tmps = [vT0, vT1]
        for sw in ('v_permlane16_swap_b32', 'v_permlane32_swap_b32'):
            for r, t in zip(regs, tmps): e('v_mov_b32 v%d, v%d' % (t, r))
            e('s_nop 1')
            for r, t in zip(regs, tmps): e('%s v%d, v%d' % (sw, r, t))
            e('s_nop 1')
            for r, t in zip(regs, tmps): e('%s v%d, v%d, v%d' % (op, r, r, t))
    xreduce(vM, 'v_max_f32')
    c('softmax: exp / sum / pack')
    vMC = [vVT, vVT + 1]; vL2 = [vVT + 2, vVT + 3]
    for u in range(2):
        e('v_mul_f32 v%d, s%d, v%d' % (vMC[u], sC, vM[u]))
        e('v_mov_b32 v%d, 0' % vL[u])
    for u in range(2):
        for k in range(2):
            r = vTS + 2 * u + k
            e('v_fma_f32 v%d, v%d, s%d, -v%d' % (r, r, sC, vMC[u]))
    for r in range(vTS, vTS + 4): e('v_exp_f32 v%d, v%d' % (r, r))
    e('s_nop 0')
    for u in range(2): e('v_add_f32 v%d, v%d, v%d' % (vL2[u], vTS + 2 * u, vTS + 2 * u + 1))
    e('v_cvt_pk_bf16_f32 v%d, v%d, v%d' % (vTS, vTS, vTS + 1))
    e('v_mov_b32 v%d, 0' % (vTS + 1))
    e('v_cvt_pk_bf16_f32 v%d, v%d, v%d' % (vTS + 2, vTS + 2, vTS + 3))
    e('v_mov_b32 v%d, 0' % (vTS + 3))
    for b in range(8):
        for u in range(2):
            base = vS + b * 16 + u * 8
            for k in range(8): e('v_fma_f32 v%d, v%d, s%d, -v%d' % (base + k, base + k, sC, vMC[u]))
            for k in range(8): e('v_exp_f32 v%d, v%d' % (base + k, base + k))
            for k in range(0, 8, 2):
                e('v_add_f32 v%d, v%d, v%d' % (vL[u], vL[u], base + k))
                e('v_add_f32 v%d, v%d, v%d' % (vL2[u], vL2[u], base + k + 1))
            for k in range(4):
                e('v_cvt_pk_bf16_f32 v%d, v%d, v%d' % (vP + b * 8 + u * 4 + k, base + 2 * k, base + 2 * k + 1))
    for u in range(2): e('v_add_f32 v%d, v%d, v%d' % (vL[u], vL[u], vL2[u]))
    xreduce(vL, 'v_add_f32')
    c('LDS / output addresses; publish (m,l)')
    a0, a1, a2 = vVT, vVT + 1, vVT + 2
    if WP: e('v_and_b32 v%d, 63, v0' % a0)
    else: e('v_lshrrev_b32 v%d, 4, v%d' % (a0, vVOFF))
    e('v_and_b32 v%d, 15, v%d' % (a1, a0))
    e('v_lshrrev_b32 v%d, 4, v%d' % (a2, a0))
    e('v_mul_u32_u24 v%d, %d, v%d' % (vWA, ROW, a1))
    e('v_lshl_add_u32 v%d, v%d, 7, v%d' % (vWA, a2, vWA))
    e('s_mul_i32 s%d, s%d, %d' % (sT, sWAVE, WSZ))
    e('v_add_u32 v%d, s%d, v%d' % (vWA, sT, vWA))
    e('s_lshl_b32 s%d, s%d, 8' % (sT, sWAVE))
    e('s_add_u32 s%d, s%d, %d' % (sT, sT, MLB))
    e('v_lshlrev_b32 v%d, 3, v%d' % (vMLA, a1))
    e('v_add_u32 v%d, s%d, v%d' % (vMLA, sT, vMLA))
    for u in range(2):
        e('ds_write_b64 v%d, v[%d:%d] offset:%d' % (vMLA, vM[u], vL[u], u * 128))
    e('v_lshrrev_b32 v%d, 4, v0' % a0)
    e('v_and_b32 v%d, 15, v0' % a1)
    e('v_mul_u32_u24 v%d, %d, v%d' % (vRA, ROW, a0))
    e('v_lshl_add_u32 v%d, v%d, 5, v%d' % (vRA, a1, vRA))
    e('v_add_u32 v%d, %d, v%d' % (vRB, 4 * WSZ, vRA))
    e('v_lshlrev_b32 v%d, 3, v%d' % (vRM, a0))
    e('v_add_u32 v%d, %d, v%d' % (vRM, MLB, vRM))
    e('v_lshlrev_b32 v%d, 8, v%d' % (vOA, a0))
    e('v_lshrrev_b32 v%d, 2, v%d' % (a2, a1))
    e('v_lshl_add_u32 v%d, v%d, 6, v%d' % (vOA, a2, vOA))
    e('v_and_b32 v%d, 3, v%d' % (a2, a1))
    e('v_lshl_add_u32 v%d, v%d, 2, v%d' % (vOA, a2, vOA))
    stamp()
    c('tree PV (initialises O)')
    g.wait([('u', 16)])
    sa = unit_slot[16]
    for cc in range(4):
        tb = vVT + (cc % 2) * 8
        e('v_perm_b32 v%d, v%d, v%d, s%d' % (tb, sa + 4 + cc, sa + cc, sPLO))
        e('v_mov_b32 v%d, 0' % (tb + 1))
        e('v_perm_b32 v%d, v%d, v%d, s%d' % (tb + 2, sa + 4 + cc, sa + cc, sPHI))
        e('v_mov_b32 v%d, 0' % (tb + 3))
        e('s_nop 1')
        for h in range(2):
            for u in range(2):
                mf(vO + ((2 * cc + h) * 2 + u) * 4, tb + 2 * h, vTS + 2 * u, '0', k16=True)
    free.append(sa); done[0] += 1; fill()
    c('V phase')
    def owrite(cc):
        for h in range(2):
            for u in range(2):
                j = 2 * cc + h; d = vO + (j * 2 + u) * 4
                e('ds_write_b128 v%d, v[%d:%d] offset:%d' % (vWA, d, d + 3, u * 16 * ROW + j * 16))
    for b in range(8):
        g.wait([('u', 17 + 2 * b), ('u', 18 + 2 * b)])
        sa, sb = unit_slot[17 + 2 * b], unit_slot[18 + 2 * b]
        rows = [sa + 4 * i for i in range(4)] + [sb + 4 * i for i in range(4)]
        for cc in range(4):
            tb = vVT + (cc % 2) * 8
            for p in range(4):
                e('v_perm_b32 v%d, v%d, v%d, s%d' % (tb + p, rows[2 * p + 1] + cc, rows[2 * p] + cc, sPLO))
            for p in range(4):
                e('v_perm_b32 v%d, v%d, v%d, s%d' % (tb + 4 + p, rows[2 * p + 1] + cc, rows[2 * p] + cc, sPHI))
            if b == 7 and cc > 0: owrite(cc - 1)
            for h in range(2):
                for u in range(2):
                    d = vO + ((2 * cc + h) * 2 + u) * 4
                    mf(d, tb + 4 * h, vP + b * 8 + u * 4, acc(d))
        free.append(sa); free.append(sb); done[0] += 2
        if PRIO == 1 and b == 3: e('s_setprio 0')
        if GROW and b % 2 == 1: free.append(vP + (b - 1) * 8)
        fill()
    stamp()
    c('combine through LDS')
    e('s_nop 7')
    owrite(3)
    e('s_waitcnt lgkmcnt(0)')
    stamp()
    if DRY:
        e('s_mov_b32 s4, 0')
        e('s_cmp_lt_u32 s%d, %d' % (sWAVE, DRY))
        e('s_cbranch_scc1 L_comb')
        g.lab('L_bar')
        e('s_mov_b32 s4, 1')
    e('s_barrier')
    if DRY: g.lab('L_comb')
    stamp()
    vR = 16; vX = 32; vF = vRING; vMM = vRING + 8; vLL = vRING + 9; vY = vRING + 16
    def rdp(w):
        base = vRA if w < 4 else vRB; off = (w % 4) * WSZ
        e('ds_read_b128 v[%d:%d], v%d offset:%d' % (vX + 8 * w, vX + 8 * w + 3, base, off))
        e('ds_read_b128 v[%d:%d], v%d offset:%d' % (vX + 8 * w + 4, vX + 8 * w + 7, base, off + 16))
    for w in range(NW): e('ds_read_b64 v[%d:%d], v%d offset:%d' % (vR + 2 * w, vR + 2 * w + 1, vRM, w * 256))
    for w in range(3): rdp(w)
    e('s_waitcnt lgkmcnt(6)')
    for w in range(3, 7): rdp(w)
    e('v_max_f32 v%d, v%d, v%d' % (vMM, vR, vR + 2))
    for w in range(2, NW, 2): e('v_max3_f32 v%d, v%d, v%d, v%d' % (vMM, vMM, vR + 2 * w, vR + 2 * w + 2))
    e('v_mul_f32 v%d, s%d, v%d' % (vMM, sC, vMM))
    for w in range(NW): e('v_fma_f32 v%d, v%d, s%d, -v%d' % (vF + w, vR + 2 * w, sC, vMM))
    for w in range(NW): e('v_exp_f32 v%d, v%d' % (vF + w, vF + w))
    e('s_nop 0')
    e('v_mul_f32 v%d, v%d, v%d' % (vLL, vF, vR + 1))
    for w in range(1, NW): e('v_fma_f32 v%d, v%d, v%d, v%d' % (vLL, vF + w, vR + 2 * w + 1, vLL))
    e('v_rcp_f32 v%d, v%d' % (vLL, vLL))
    e('s_waitcnt lgkmcnt(8)')
    rdp(7)
    def pk(w, k):
        f = vF + (w & ~1)
        sel = 'op_sel:[0,1,0] op_sel_hi:[1,1,1]' if (w & 1) else 'op_sel_hi:[1,0,1]'
        if w == 0:
            e('v_pk_mul_f32 v[%d:%d], v[%d:%d], v[%d:%d] op_sel_hi:[1,0]' % (vY + k, vY + k + 1, vX + k, vX + k + 1, f, f + 1))
        else:
            e('v_pk_fma_f32 v[%d:%d], v[%d:%d], v[%d:%d], v[%d:%d] %s' % (vY + k, vY + k + 1, vX + 8 * w + k, vX + 8 * w + k + 1, f, f + 1, vY + k, vY + k + 1, sel))
    for w in range(NW):
        if w >= 3: e('s_waitcnt lgkmcnt(%d)' % (2 * (7 - w)))
        for k in range(0, 8, 2): pk(w, k)
    for k in range(8): e('v_mul_f32 v%d, v%d, v%d' % (vY + k, vY + k, vLL))
    for r in range(4): e('v_cvt_pk_bf16_f32 v%d, v%d, v%d' % (vY + 8 + r, vY + r, vY + 4 + r))
    if int(opts.get('x4', 1)):
        D = vY + 8
        e('s_mov_b32 s%d, 0xcccccccc' % sT); e('s_mov_b32 s%d, 0xcccccccc' % sT2)
        for (msk, qp, prs) in (('s[%d:%d]' % (sODD, sODD + 1), '[1,0,3,2]', ((0, 1), (2, 3))), ('s[%d:%d]' % (sT, sT2), '[2,3,0,1]', ((0, 2), (1, 3)))):
            e('s_mov_b64 exec, %s' % msk)
            for x, y in prs: e('v_swap_b32 v%d, v%d' % (D + x, D + y))
            e('s_mov_b64 exec, -1')
            e('s_nop 1')
            for x, y in prs: e('v_mov_b32_dpp v%d, v%d quad_perm:%s row_mask:0xf bank_mask:0xf' % (D + y, D + y, qp))
            e('s_mov_b64 exec, %s' % msk)
            for x, y in prs: e('v_swap_b32 v%d, v%d' % (D + x, D + y))
        e('s_mov_b64 exec, -1')
        e('v_lshlrev_b32 v%d, 4, v0' % vOA)
        if DRY:
            e('s_cmp_eq_u32 s4, 0')
            e('s_cbranch_scc1 L_bar')
        e('buffer_store_dwordx4 v[%d:%d], v%d, s[%d:%d], 0 offen%s' % (D, D + 3, vOA, sOUT, sOUT + 3, (' ' + opts.get('fs', '')).rstrip()))
    else:
        for r in range(4):
            e('buffer_store_dword v%d, v%d, s[%d:%d], 0 offen offset:%d' % (vY + 8 + r, vOA, sOUT, sOUT + 3, 16 * r))
    if STAMP:
        e('s_waitcnt vmcnt(0)')
        stamp()
        e('s_load_dwordx2 s[36:37], s[0:1], 64')
        e('s_lshl_b32 s%d, s2, 3' % sT); e('s_add_u32 s%d, s%d, s%d' % (sT, sT, sWAVE)); e('s_lshl_b32 s%d, s%d, 6' % (sT, sT))
        e('s_waitcnt lgkmcnt(0)')
        e('s_add_u32 s36, s36, s%d' % sT); e('s_addc_u32 s37, s37, 0'); e('s_mov_b32 s38, 64'); e('s_mov_b32 s39, 0x00020000')
        e('v_mov_b32 v1, 0')
        for k in range(nst[0]):
            e('v_mov_b32 v2, s%d' % (64 + 2 * k))
            e('buffer_store_dword v2, v1, s[36:39], 0 offen offset:%d' % (4 * k)); e('s_nop 1')
    g.lab('L_end')
    e('s_endpgm')
    lds = MLB + NW * 256
    out = HDR + '; @launch grid=(256,1,1) block=(512,1,1) lds=%d\n' % lds
    out += '.amdgcn_target "amdgcn-amd-amdhsa--gfx950"\n.text\n.globl %s_kernel\n.p2align 8\n.type %s_kernel,@function\n%s_kernel:\n' % (NAME, NAME, NAME)
    out += '\n'.join(g.l) + '\n'
    out += '''.section .rodata,"a"
.p2align 6
.amdhsa_kernel %s_kernel
  .amdhsa_next_free_vgpr 256
  .amdhsa_next_free_sgpr %d
  .amdhsa_accum_offset 256
  .amdhsa_group_segment_fixed_size 0
  .amdhsa_kernarg_size 72
  .amdhsa_user_sgpr_count 2
  .amdhsa_user_sgpr_kernarg_segment_ptr 1
  .amdhsa_system_sgpr_workgroup_id_x 1
.end_amdhsa_kernel
''' % (NAME, 96 if STAMP else 64)
    return out

if __name__ == '__main__':
    path = sys.argv[1]
    opts = dict(a.split('=') for a in sys.argv[2:])
    opts = {k: v.replace('+', ' ') for k, v in opts.items()}
    open(path, 'w').write(gen(opts))
```
